```python
import torch

def _softmax(x, axis=-1):
    return torch.softmax(x, dim=axis)

def _gelu(x):
    return torch.nn.functional.gelu(x, approximate='tanh')

def _silu(x):
    return torch.nn.functional.silu(x)

def _sigmoid(x):
    return torch.sigmoid(x)

def _layernorm(x, axis=-1, eps=1e-05):
    m = x.mean(dim=axis, keepdim=True)
    v = x.var(dim=axis, keepdim=True, unbiased=False)
    return (x - m) / torch.sqrt(v + eps)

def _scatter_add(tgt, idx, src, axis=0):
    return tgt.clone().index_add_(axis, idx, src)

def _segment_sum(src, seg, n):
    out = torch.zeros((n,) + src.shape[1:], dtype=src.dtype)
    return out.index_add_(0, seg, src)

def _pad(x, pw):
    flat = tuple((v for pair in reversed(pw) for v in pair))
    return torch.nn.functional.pad(x, flat)
kernel_name = 'recurrent_scan__memory_aug_recurrent_mem_tr__dense_activation_gelu__prompt'

def setup_inputs():

    _w = lambda a: (lambda t: t.to(torch.bfloat16) if t.is_floating_point() else t)(torch.as_tensor(a))

    def _A_setup():
        B, S, Dm = (1, 2048, 640)
        H, Dh = (32, 192)
        M, seg = (8, 32)
        seg = min(seg, S)
        S = S // seg * seg
        return {'x': _w((lambda *s: torch.randn(*s, dtype=torch.bfloat16) * 0.1)(B, S, Dm)), 'mem0': _w((lambda *s: torch.randn(*s, dtype=torch.bfloat16) * 1.6)(B, M, Dm)), 'Wq': _w((lambda *s: torch.randn(*s, dtype=torch.bfloat16) * 0.8)(Dm, H, Dh) * Dm ** (-0.5)), 'Wk': _w((lambda *s: torch.randn(*s, dtype=torch.bfloat16) * 0.8)(Dm, H, Dh) * Dm ** (-0.5)), 'Wv': _w((lambda *s: torch.randn(*s, dtype=torch.bfloat16) * 1.6)(Dm, H, Dh) * Dm ** (-0.5)), 'Wo': _w((lambda *s: torch.randn(*s, dtype=torch.bfloat16) * 1.6)(H, Dh, Dm) * (H * Dh) ** (-0.5)), 'seg_len': seg}
    _A_in = _A_setup()

    def _B_setup():
        B, S, D, F = (1, 2048, 640, 1536)
        return {'x': _w((lambda *s: torch.randn(*s, dtype=torch.bfloat16) * 0.1)(B, S, D)), 'w1': _w((lambda *s: torch.randn(*s, dtype=torch.bfloat16) * 0.4)(D, F) * D ** (-0.5)), 'b1': _w((lambda *s: torch.randn(*s, dtype=torch.bfloat16) * 0.4)(F) * 0.01), 'w2': _w((lambda *s: torch.randn(*s, dtype=torch.bfloat16) * 0.4)(F, D) * F ** (-0.5)), 'b2': _w((lambda *s: torch.randn(*s, dtype=torch.bfloat16) * 0.4)(D) * 0.01)}
    _B_in = _B_setup()
    return {'A_x': _A_in['x'], 'A_mem0': _A_in['mem0'], 'A_Wq': _A_in['Wq'], 'A_Wk': _A_in['Wk'], 'A_Wv': _A_in['Wv'], 'A_Wo': _A_in['Wo'], 'A_seg_len': _A_in['seg_len'], 'B_x': _B_in['x'], 'B_w1': _B_in['w1'], 'B_b1': _B_in['b1'], 'B_w2': _B_in['w2'], 'B_b2': _B_in['b2']}

def reference(A_x, A_mem0, A_Wq, A_Wk, A_Wv, A_Wo, A_seg_len, B_x, B_w1, B_b1, B_w2, B_b2):

    def _A_ref(x, mem0, Wq, Wk, Wv, Wo, seg_len):
        B, S, Dm = x.shape
        H, Dh = (Wq.shape[1], Wq.shape[2])
        M = mem0.shape[1]
        scale = Dh ** (-0.5)
        n_seg = S // seg_len
        L = M + seg_len
        idx = torch.arange(L)
        mask = (idx[:, None] < M) | (idx[:, None] >= idx[None, :])
        mem = mem0
        outs = []
        for s in range(n_seg):
            xs = x[:, s * seg_len:(s + 1) * seg_len, :].clone()
            h = torch.concatenate([mem, xs], axis=1)
            q = torch.einsum('btd,dhe->bhte', h, Wq)
            k = torch.einsum('btd,dhe->bhte', h, Wk)
            v = torch.einsum('btd,dhe->bhte', h, Wv)
            scores = torch.einsum('bhqe,bhke->bhqk', q, k) * scale
            scores = torch.where(mask[None, None], scores, -1000000000.0)
            p = _softmax(scores, axis=-1)
            o = torch.einsum('bhqk,bhke->bhqe', p, v)
            o = torch.einsum('bhte,hed->btd', o, Wo)
            mem = o[:, :M, :].clone()
            outs.append(o[:, M:, :])
        return torch.concatenate(outs, axis=1)

    def _B_ref(x, w1, b1, w2, b2):
        h = torch.einsum('bsd,df->bsf', x, w1) + b1
        h = _gelu(h)
        return torch.einsum('bsf,fd->bsd', h, w2) + b2
    x = A_x
    xn = _layernorm(x, axis=-1)
    s = _A_ref(xn, A_mem0, A_Wq, A_Wk, A_Wv, A_Wo, A_seg_len)
    g = _silu(_B_ref(xn, B_w1, B_b1, B_w2, B_b2))
    return x + s * g
```

```python
import re


class Reg:
    __slots__ = ("k", "i", "n")

    def __init__(self, k, i, n=1):
        self.k, self.i, self.n = k, i, n

    def __str__(self):
        if self.n == 1:
            return f"{self.k}{self.i}"
        return f"{self.k}[{self.i}:{self.i + self.n - 1}]"

    __repr__ = __str__

    def __getitem__(self, x):
        if isinstance(x, slice):
            a = x.start or 0
            b = x.stop if x.stop is not None else self.n
            assert 0 <= a < b <= self.n, (self, x)
            return Reg(self.k, self.i + a, b - a)
        assert 0 <= x < self.n, (self, x)
        return Reg(self.k, self.i + x, 1)

    def units(self):
        return [(self.k, self.i + j) for j in range(self.n)]


def v(i, n=1):
    assert 0 <= i and i + n <= 256, (i, n)
    return Reg("v", i, n)


def a(i, n=1):
    assert 0 <= i and i + n <= 256, (i, n)
    return Reg("a", i, n)


def s(i, n=1):
    assert 0 <= i and i + n <= 102, (i, n)
    return Reg("s", i, n)


VCC = "vcc"
EXEC = "exec"
M0 = "m0"
OFF = "off"

TRANS = ("v_exp_f32", "v_log_f32", "v_rcp_f32", "v_rsq_f32", "v_sqrt_f32", "v_sin_f32", "v_cos_f32",
         "v_rcp_iflag_f32")


def units_of(o):
    if isinstance(o, Reg):
        return o.units()
    if isinstance(o, str):
        t = o.strip()
        neg = t.startswith("-") and not re.match(r"-\d", t)
        if t in ("vcc", "exec"):
            return [(t, 0)]
        if t == "m0":
            return [("m0", 0)]
        m = re.fullmatch(r"-?(?:abs\()?([vas])(\d+)\)?", t)
        if m:
            return [(m.group(1), int(m.group(2)))]
    return []


class Ins:
    __slots__ = ("op", "ops", "mods", "label", "target", "rd", "wr", "cls", "text", "srcC", "passes",
                 "storedata", "dpp")

    def __init__(self, op, ops=(), mods="", label=None):
        self.op, self.ops, self.mods, self.label = op, list(ops), mods, label
        self.target = None
        self.rd, self.wr = set(), set()
        self.srcC = set()
        self.passes = 0
        self.storedata = set()
        self.dpp = False
        self.cls = None
        if label is None:
            self._analyze()

    def _analyze(self):
        op, ops = self.op, self.ops
        U = lambda o: set(units_of(o))
        if op.startswith("v_mfma"):
            self.cls = "mfma"
            self.wr = U(ops[0])
            self.rd = U(ops[1]) | U(ops[2]) | U(ops[3])
            self.srcC = U(ops[3])
            self.passes = 8 if "32x32" in op else 4
        elif op.startswith("v_"):
            self.cls = "valu"
            self.dpp = "_dpp" in op or "quad_perm" in self.mods or "row_" in self.mods
            if op.startswith("v_cmp"):
                self.wr = U(ops[0])
                for o in ops[1:]:
                    self.rd |= U(o)
            elif op.startswith("v_permlane") and "swap" in op:
                self.wr = U(ops[0]) | U(ops[1])
                self.rd = U(ops[0]) | U(ops[1])
            elif op in ("v_add_co_u32", "v_sub_co_u32", "v_addc_co_u32", "v_subb_co_u32"):
                self.wr = U(ops[0]) | U(ops[1])
                for o in ops[2:]:
                    self.rd |= U(o)
            else:
                self.wr = U(ops[0])
                for o in ops[1:]:
                    self.rd |= U(o)
                if op.startswith("v_fmac") or op.startswith("v_mac") or self.dpp or op.startswith("v_writelane"):
                    self.rd |= U(ops[0])
                if op.startswith("v_cndmask") and len(ops) == 3:
                    self.rd |= {("vcc", 0)}
            self.rd |= {("exec", 0)}
        elif op.startswith("ds_"):
            self.cls = "ds"
            if op.startswith("ds_read") or op.startswith("ds_bpermute") or op.startswith("ds_swizzle") \
                    or op.startswith("ds_permute"):
                self.wr = U(ops[0])
                for o in ops[1:]:
                    self.rd |= U(o)
            else:
                for o in ops:
                    self.rd |= U(o)
        elif op.startswith("buffer_") or op.startswith("global_"):
            self.cls = "vmem"
            lds = re.search(r"\blds\b", self.mods) is not None
            if "load" in op and not lds:
                self.wr = U(ops[0])
                for o in ops[1:]:
                    self.rd |= U(o)
            elif "load" in op and lds:
                for o in ops:
                    self.rd |= U(o)
                self.rd |= {("m0", 0)}
            elif "atomic" in op:
                for o in ops:
                    self.rd |= U(o)
                if re.search(r"\bsc0\b", self.mods):
                    self.wr = U(ops[0])
            else:
                for o in ops:
                    self.rd |= U(o)
                if "x4" in op or "x3" in op:
                    self.storedata = U(ops[0])
        elif op.startswith("s_"):
            self.cls = "salu"
            if op in ("s_branch",) or op.startswith("s_cbranch"):
                self.target = ops[0]
            elif op in ("s_waitcnt", "s_barrier", "s_nop", "s_sleep", "s_endpgm", "s_setprio"):
                pass
            elif op.startswith("s_cmp") or op.startswith("s_bitcmp"):
                for o in ops:
                    self.rd |= U(o)
            elif op.startswith("s_load") or op.startswith("s_memtime") or op.startswith("s_memrealtime"):
                self.cls = "smem"
                self.wr = U(ops[0])
                for o in ops[1:]:
                    self.rd |= U(o)
            else:
                self.wr = U(ops[0])
                for o in ops[1:]:
                    self.rd |= U(o)
                if "saveexec" in op:
                    self.wr |= {("exec", 0)}
        else:
            raise ValueError("unknown op " + op)

    def states(self):
        if self.label is not None:
            return 0
        if self.op == "s_nop":
            return int(self.ops[0]) + 1
        return 1

    def render(self):
        if self.label is not None:
            return f"{self.label}:"
        t = self.op
        if self.ops:
            t += " " + ", ".join(str(o) for o in self.ops)
        if self.mods:
            t += " " + self.mods
        return "  " + t


def isv(u):
    return u[0] in ("v", "a")


def iss(u):
    return u[0] in ("s", "vcc")


def required(p, c):
    if p.label is not None or c.label is not None:
        return 0
    n = 0
    pw_v = {u for u in p.wr if isv(u)}
    pw_s = {u for u in p.wr if iss(u)}
    if p.cls == "valu":
        if c.cls == "mfma" and pw_v & c.rd:
            n = max(n, 2)
        if c.cls == "valu":
            if pw_s & c.rd:
                if c.op.startswith("v_readlane") or c.op.startswith("v_writelane"):
                    n = max(n, 4)
                else:
                    n = max(n, 2)
            if (c.op.startswith("v_readlane") or c.op.startswith("v_readfirstlane")) and pw_v & c.rd:
                n = max(n, 1)
            if p.op in TRANS and pw_v & (c.rd | c.wr):
                n = max(n, 1)
            if c.dpp and pw_v & c.rd:
                n = max(n, 2)
            if c.op.startswith("v_permlane") and pw_v & c.rd:
                n = max(n, 2)
            if ("exec", 0) in p.wr:
                n = max(n, 5)
        if c.cls == "vmem" and pw_s & c.rd:
            n = max(n, 5)
        if c.cls == "mfma" and ("exec", 0) in p.wr:
            n = max(n, 4)
    if p.cls == "mfma":
        big = {4: 8, 8: 12}[p.passes]
        if c.cls == "mfma":
            ab = set(units_of(c.ops[1])) | set(units_of(c.ops[2]))
            if p.wr & ab:
                n = max(n, big)
            if p.wr & c.srcC:
                if c.srcC == p.wr and c.passes == p.passes:
                    pass
                else:
                    n = max(n, big - 2)
            elif p.wr & c.wr:
                n = max(n, big - 2)
        elif c.cls in ("valu", "vmem", "ds"):
            if p.wr & (c.rd | c.wr):
                n = max(n, big)
            if c.cls == "valu" and p.srcC & c.wr:
                n = max(n, {4: 3, 8: 7}[p.passes])
    if p.cls == "salu":
        if ("m0", 0) in p.wr and ("m0", 0) in c.rd and c.cls in ("vmem", "ds"):
            n = max(n, 1)
    if p.cls == "vmem" and p.storedata:
        if c.cls in ("valu", "mfma") and p.storedata & c.wr:
            n = max(n, 2)
        elif p.storedata & c.wr:
            n = max(n, 1)
    return n


class Asm:
    def __init__(self):
        self.ins = []
        self._lab = 0

    def I(self, op, *ops, mods=""):
        self.ins.append(Ins(op, ops, mods))

    def label(self, name):
        self.ins.append(Ins(None, label=name))

    def newlabel(self, base="L"):
        self._lab += 1
        return f"{base}_{self._lab}"

    def fix_hazards(self, maxd=21):
        ins = self.ins
        changed = True
        total = 0
        while changed:
            changed = False
            labpos = {x.label: i for i, x in enumerate(ins) if x.label is not None}
            preds_br = {}
            for i, x in enumerate(ins):
                if x.target is not None:
                    preds_br.setdefault(labpos[x.target], []).append(i)

            def preds(i):
                r = []
                if i > 0:
                    p = ins[i - 1]
                    if not (p.op in ("s_branch", "s_endpgm")):
                        r.append(i - 1)
                r += preds_br.get(i, [])
                return r

            out = []
            for i, c in enumerate(ins):
                if c.label is None and c.op not in ("s_nop",):
                    need = 0
                    stack = [(p, 0) for p in preds(i)]
                    seen = {}
                    while stack:
                        j, d = stack.pop()
                        if d >= maxd:
                            continue
                        if seen.get(j, 99) <= d:
                            continue
                        seen[j] = d
                        p = ins[j]
                        r = required(p, c)
                        if r > d:
                            need = max(need, r - d)
                        d2 = d + p.states()
                        for q in preds(j):
                            stack.append((q, d2))
                    if need > 0:
                        changed = True
                        total += need
                        k = need
                        while k > 0:
                            m = min(k, 16)
                            out.append(Ins("s_nop", [m - 1]))
                            k -= m
                        out.append(c)
                        out.extend(ins[i + 1:])
                        break
                out.append(c)
            if changed:
                ins = out
        self.ins = ins
        return total

    def fix_hazards_fast(self, maxd=21):
        for _ in range(4):
            ins = self.ins
            labpos = {x.label: i for i, x in enumerate(ins) if x.label is not None}
            preds_br = {}
            for i, x in enumerate(ins):
                if x.target is not None:
                    preds_br.setdefault(labpos[x.target], []).append(i)
            extra = [0] * len(ins)

            def preds(i):
                r = []
                if i > 0:
                    p = ins[i - 1]
                    if not (p.op in ("s_branch", "s_endpgm")):
                        r.append(i - 1)
                r += preds_br.get(i, [])
                return r

            tot = 0
            for i, c in enumerate(ins):
                if c.label is not None or c.op == "s_nop":
                    continue
                need = 0
                stack = [(p, 0) for p in preds(i)]
                seen = {}
                while stack:
                    j, d = stack.pop()
                    if d >= maxd or seen.get(j, 99) <= d:
                        continue
                    seen[j] = d
                    p = ins[j]
                    r = required(p, c)
                    if r > d:
                        need = max(need, r - d)
                    d2 = d + p.states() + extra[j]
                    for q in preds(j):
                        stack.append((q, d2))
                extra[i] = need
                tot += need
            if tot == 0:
                return
            out = []
            for i, c in enumerate(ins):
                k = extra[i]
                while k > 0:
                    m = min(k, 16)
                    out.append(Ins("s_nop", [m - 1]))
                    k -= m
                out.append(c)
            self.ins = out

    def render(self):
        return "\n".join(x.render() for x in self.ins) + "\n"
```

```python
from asmdsl import *
import layout as L

NAME = "recurrent_scan__memory_aug_recurrent_mem_tr__dense_activation_gelu__prompt"
SC1 = "sc1"

S_X, S_MEM0, S_WQ, S_WK, S_WV, S_WO = s(4, 4), s(8, 4), s(12, 4), s(16, 4), s(20, 4), s(24, 4)
S_W1, S_B1, S_W2, S_B2, S_OUT, S_WS = s(28, 4), s(32, 4), s(36, 4), s(40, 4), s(44, 4), s(48, 4)
S_W = s(52, 4)
S_WAVE = s(56)
S_T = [s(57 + i) for i in range(7)]


def f32bits(x):
    import struct
    return struct.unpack("<I", struct.pack("<f", x))[0]


def prologue(A):
    A.I("s_load_dwordx16", s(64, 16), s(0, 2), 0)
    A.I("s_load_dwordx8", s(80, 8), s(0, 2), 64)
    A.I("s_load_dwordx2", s(88, 2), s(0, 2), 96)
    A.I("s_load_dwordx2", s(90, 2), s(0, 2), 112)
    A.I("v_and_b32", v(1), 63, v(0))
    A.I("v_lshrrev_b32", v(2), 6, v(0))
    A.I("v_readfirstlane_b32", S_WAVE, v(2))
    A.I("s_waitcnt", "lgkmcnt(0)")

    def srd(dst, p, nbytes):
        A.I("s_mov_b32", dst[0], s(p))
        A.I("s_and_b32", dst[1], s(p + 1), 0xffff)
        A.I("s_mov_b32", dst[2], nbytes)
        A.I("s_mov_b32", dst[3], 0x00020000)

    srd(S_X, 64, L.S * L.D * 2)
    srd(S_MEM0, 66, L.M * L.D * 2)
    srd(S_WQ, 68, L.D * L.HD * 2)
    srd(S_WK, 70, L.D * L.HD * 2)
    srd(S_WV, 72, L.D * L.HD * 2)
    srd(S_WO, 74, L.D * L.HD * 2)
    srd(S_W1, 80, L.D * L.F * 2)
    srd(S_B1, 82, L.F * 2)
    srd(S_W2, 84, L.D * L.F * 2)
    srd(S_B2, 86, L.D * 2)
    srd(S_OUT, 88, L.S * L.D * 2)
    srd(S_WS, 90, L.WS_BYTES)
    srd(S_W, 68, L.D * L.HD * 2)


def row_sum_all(A, x, tmp, st):
    for m in ("quad_perm:[1,0,3,2]", "quad_perm:[2,3,0,1]", "row_half_mirror", "row_mirror"):
        A.I("v_add_f32_dpp", tmp, x, x, mods=m + " row_mask:0xf bank_mask:0xf")
        A.I("v_mov_b32", x, tmp)
    for i in range(4):
        A.I("v_readlane_b32", st[i], x, 16 * i)
    A.I("v_mov_b32", x, st[0])
    for i in range(1, 4):
        A.I("v_add_f32", x, st[i], x)


def bf16_round(A, dst, src):
    A.I("v_cvt_pk_bf16_f32", dst, src, src)
    A.I("v_lshlrev_b32", dst, 16, dst)


def spin_flag(A, s_off, target, vt, st, tag):
    lp = A.newlabel("spin" + tag)
    dn = A.newlabel("spind" + tag)
    A.I("s_mov_b32", st[1], 0)
    A.label(lp)
    A.I("buffer_load_dword", vt, OFF, S_WS, s_off, mods=SC1)
    A.I("s_waitcnt", "vmcnt(0)")
    A.I("v_readfirstlane_b32", st[0], vt)
    A.I("s_cmp_ge_u32", st[0], target)
    A.I("s_cbranch_scc1", dn)
    A.I("s_sleep", 4)
    A.I("s_add_u32", st[1], st[1], 1)
    A.I("s_cmp_lt_u32", st[1], 1 << 22)
    A.I("s_cbranch_scc1", lp)
    A.label(dn)


def signal_flag(A, s_off, vt, tag):
    sk = A.newlabel("sig" + tag)
    A.I("s_waitcnt", "vmcnt(0)")
    A.I("s_barrier")
    A.I("s_cmp_lg_u32", S_WAVE, 0)
    A.I("s_cbranch_scc1", sk)
    A.I("v_mov_b32", vt, 1)
    A.I("s_mov_b64", EXEC, 1)
    A.I("buffer_atomic_add", vt, OFF, S_WS, s_off, mods=SC1)
    A.I("s_mov_b64", EXEC, -1)
    A.label(sk)
```

```python
S = 2048
D = 640
H = 32
DH = 192
M = 8
SEG = 32
NSEG = 64
F = 1536
HD = H * DH


def al(x, a=4096):
    return (x + a - 1) // a * a


WS_FLAGS = 0
FLAGS_BYTES = 65536
FL_KZ = 0
FL_Q = 16
FL_F1 = 32
FL_G = 48
FL_REC = 64
FL_ATT = 128

WS_MEM = FLAGS_BYTES
MEM_STEP = 10240
WS_FILL0 = WS_MEM + MEM_STEP
WS_PM = al(WS_MEM + 65 * MEM_STEP)
PM_HEAD = 640
PM_STEP = 32 * PM_HEAD
WS_YT = al(WS_PM + 64 * PM_STEP)
YT_HEAD = 10240
YT_STEP = 32 * YT_HEAD
WS_FILL1 = WS_YT + 64 * YT_STEP
WS_KM = al(WS_FILL1)
KM_HEAD = 8 * DH * 2
KM_STEP = 32 * KM_HEAD
WS_XN = al(WS_KM + 64 * KM_STEP)
WS_KX = al(WS_XN + S * D * 2)
WS_QX = al(WS_KX + S * HD * 2)
WS_ZT = al(WS_QX + S * HD * 2)
ZT_HEAD = D * SEG * 2
ZT_STEP = 32 * ZT_HEAD
WS_H1 = al(WS_ZT + 64 * ZT_STEP)
WS_G = al(WS_H1 + S * F * 2)
WS_PXZ = al(WS_G + S * D * 2)
PXZ_HEAD = 2048
PXZ_STEP = 32 * PXZ_HEAD
WS_PXM = al(WS_PXZ + 64 * PXZ_STEP)
PXM_HEAD = 512
PXM_STEP = 32 * PXM_HEAD
WS_END = al(WS_PXM + 64 * PXM_STEP)
WS_BYTES = 268435456
assert WS_END <= WS_BYTES, WS_END

if __name__ == "__main__":
    for k, vv in sorted(globals().items(), key=lambda kv: str(kv[1])):
        if k.startswith("WS_"):
            print(k, hex(vv), vv)
```

```python
from asmdsl import *
import layout as L
from common import *

LMEM = 0
LRED = 10240
LRED2 = 22528
LZ = 26624
LW = 61440
R_G0, R_G2, R_BRD, R_LW, R_PZ, R_PM, R_Y, R_Z, R_ST, R_KX, R_LDS1, R_LDS2 = [v(2 + i) for i in range(12)]
R_T = [v(14), v(15)]
R_BR = v(16, 16)
R_WR = v(32, 16)
R_ACC = v(48, 40)
R_X = v(88, 24)
SR_S = s(64)
SR_H = s(65)
SR_ROLE = s(66)
SR_G0 = s(67)
SR_MSK = s(68, 2)
SR_M8 = s(70, 2)
SR_A = [s(72 + i) for i in range(12)]
SR_CNT = s(84)
SR_P = s(86, 2)


def frag_reg(idx):
    if idx < 64:
        return a(4 * idx, 4)
    assert idx < 100
    return v(112 + 4 * (idx - 64), 4)


def rec_init_common(A):
    T = [v(96 + i) for i in range(8)]
    g, i8, m16, t1, t2 = T[0:5]
    A.I("v_lshrrev_b32", g, 4, v(1))
    A.I("v_and_b32", i8, 7, v(1))
    A.I("v_and_b32", m16, 15, v(1))
    A.I("v_lshlrev_b32", R_G0, 4, v(0))
    A.I("v_add_u32", R_G2, 8192, R_G0)
    A.I("v_cmp_gt_u32", VCC, 128, v(0))
    A.I("v_cndmask_b32", R_G2, R_G0, R_G2, VCC)
    A.I("v_lshlrev_b32", R_BRD, 7, g)
    A.I("v_lshl_add_u32", R_BRD, i8, 4, R_BRD)
    A.I("s_mul_i32", S_T[0], S_WAVE, 20 * 1024)
    A.I("s_add_u32", S_T[0], S_T[0], LW)
    A.I("v_lshlrev_b32", R_LW, 4, v(1))
    A.I("v_add_u32", R_LW, S_T[0], R_LW)
    lab1 = A.newlabel("rg")
    lab2 = A.newlabel("rg")
    A.I("s_mov_b32", SR_M8[0], 0x00ff00ff)
    A.I("s_mov_b32", SR_M8[1], 0x00ff00ff)
    A.I("s_mov_b32", SR_MSK[0], 0x00ff00ff)
    A.I("s_cmp_lt_u32", s(2), 32)
    A.I("s_cbranch_scc1", lab1)
    A.I("s_cmp_ge_u32", s(2), 48)
    A.I("s_cbranch_scc1", lab1)
    A.I("s_sub_u32", SR_G0, s(2), 32)
    A.I("s_lshl_b32", SR_G0, SR_G0, 1)
    A.I("s_mov_b32", SR_MSK[1], 0x00ff00ff)
    A.I("v_mov_b32", t1, m16)
    A.I("s_branch", lab2)
    A.label(lab1)
    A.I("s_sub_u32", S_T[0], s(2), 16)
    A.I("s_cmp_lt_u32", s(2), 32)
    A.I("s_cselect_b32", SR_G0, s(2), S_T[0])
    A.I("s_add_u32", SR_G0, SR_G0, 32)
    A.I("s_mov_b32", SR_MSK[1], 0)
    A.I("v_mov_b32", t1, i8)
    A.label(lab2)
    A.I("s_lshl_b32", S_T[0], SR_G0, 3)
    A.I("v_add_u32", t1, S_T[0], t1)
    A.I("s_mul_i32", S_T[1], S_WAVE, 8 * L.PM_HEAD)
    A.I("v_mul_u32_u24", R_PZ, 80, i8)
    A.I("v_add_u32", R_PZ, S_T[1], R_PZ)
    A.I("v_mul_u32_u24", R_PM, L.PM_HEAD, g)
    A.I("v_add_u32", R_PM, R_PM, R_PZ)
    A.I("v_lshl_add_u32", R_PZ, g, 4, R_PZ)
    A.I("v_add_u32", R_PZ, 16, R_PZ)
    A.I("s_mul_i32", S_T[1], S_WAVE, 8 * L.YT_HEAD)
    A.I("v_mul_u32_u24", R_Y, L.YT_HEAD, g)
    A.I("v_lshl_add_u32", R_Y, t1, 4, R_Y)
    A.I("v_add_u32", R_Y, S_T[1], R_Y)
    A.I("s_mul_i32", S_T[1], S_WAVE, 8 * L.ZT_HEAD)
    A.I("v_lshlrev_b32", R_Z, 6, t1)
    A.I("v_lshl_add_u32", R_Z, g, 4, R_Z)
    A.I("v_add_u32", R_Z, S_T[1], R_Z)


def rec_init_role(A, role):
    T = [v(96 + i) for i in range(8)]
    g, i8, m16, t1, t2 = T[0:5]
    A.I("v_lshrrev_b32", g, 4, v(1))
    A.I("v_and_b32", m16, 15, v(1))
    if role == 0:
        A.I("v_mul_u32_u24", R_KX, L.HD * 2, m16)
        A.I("v_lshl_add_u32", R_KX, g, 3, R_KX)
        A.I("s_mul_i32", S_T[0], SR_H, L.DH * 2)
        A.I("s_mul_i32", S_T[1], S_WAVE, 96)
        A.I("s_add_u32", S_T[0], S_T[0], S_T[1])
        A.I("v_add_u32", R_KX, S_T[0], R_KX)
        A.I("v_mul_u32_u24", R_ST, 384, m16)
        A.I("v_lshl_add_u32", R_ST, g, 3, R_ST)
        A.I("v_add_u32", R_ST, S_T[1], R_ST)
        A.I("v_mul_u32_u24", R_LDS1, 192, m16)
        A.I("v_lshl_add_u32", R_LDS1, g, 4, R_LDS1)
        A.I("s_mul_i32", S_T[0], S_WAVE, 3072)
        A.I("s_add_u32", S_T[0], S_T[0], LRED)
        A.I("v_add_u32", R_LDS1, S_T[0], R_LDS1)
        A.I("v_lshrrev_b32", t1, 3, v(1))
        A.I("v_and_b32", t2, 7, v(1))
        A.I("v_mul_u32_u24", R_LDS2, 192, t1)
        A.I("v_add_u32", R_LDS2, LRED, R_LDS2)
        A.I("v_lshlrev_b32", g, 5, t2)
        A.I("v_add_u32", g, 32, g)
        A.I("v_cmp_lt_u32", VCC, 0, t2)
        A.I("v_cndmask_b32", g, 0, g, VCC)
        A.I("v_cmp_gt_u32", VCC, 5, t2)
        A.I("v_cndmask_b32", g, 0, g, VCC)
        A.I("v_add_u32", R_LDS2, R_LDS2, g)
    else:
        A.I("v_mul_u32_u24", R_LDS1, 384, m16)
        A.I("v_lshl_add_u32", R_LDS1, g, 3, R_LDS1)
        A.I("s_mul_i32", S_T[0], S_WAVE, 96)
        A.I("s_add_u32", S_T[0], S_T[0], LRED)
        A.I("v_add_u32", R_LDS1, S_T[0], R_LDS1)
        A.I("v_mul_u32_u24", R_LDS2, 384, m16)
        A.I("v_lshl_add_u32", R_LDS2, g, 4, R_LDS2)
        A.I("v_add_u32", R_LDS2, LRED, R_LDS2)
        A.I("s_mul_i32", S_T[0], S_WAVE, 160 * 16)
        A.I("v_lshlrev_b32", R_ST, 4, m16)
        A.I("v_lshl_add_u32", R_ST, g, 3, R_ST)
        A.I("v_add_u32", R_ST, S_T[0], R_ST)
        A.I("v_mov_b32", R_KX, 0)


def rec_load_weights(A, role):
    T = [v(96 + i) for i in range(16)]
    g, r4, c4, sig, row, cs, base, tb = T[0:8]
    doff = T[8:11]
    A.I("v_lshrrev_b32", g, 4, v(1))
    A.I("v_bfe_u32", r4, v(1), 2, 2)
    A.I("v_and_b32", c4, 3, v(1))
    A.I("s_mul_i32", S_T[0], S_WAVE, 3 * 64)
    for q in range(3):
        A.I("v_add_u32", sig, S_T[0], v(1))
        A.I("v_add_u32", sig, 64 * q, sig)
        A.I("v_mul_u32_u24", row, 2731, sig)
        A.I("v_lshrrev_b32", row, 16, row)
        A.I("v_mul_u32_u24", cs, 24, row)
        A.I("v_sub_u32", cs, sig, cs)
        A.I("v_mul_u32_u24", doff[q], L.HD * 2, row)
        A.I("v_lshl_add_u32", doff[q], cs, 4, doff[q])
    A.I("v_lshl_add_u32", base, g, 3, r4)
    A.I("v_mul_u32_u24", base, 384, base)
    A.I("v_lshl_add_u32", base, c4, 3, base)
    A.I("s_mul_i32", S_T[0], S_WAVE, 96)
    A.I("v_add_u32", base, S_T[0], base)
    S_OFF, S_L0 = SR_A[0], SR_A[1]
    A.I("s_mul_i32", S_OFF, SR_H, L.DH * 2)
    A.I("s_mul_i32", S_L0, S_WAVE, 3 * 1024)
    mats = [S_WQ, S_WK] if role == 0 else [S_WV]
    nm = len(mats)
    cb = 12288 * nm
    nbuf = 6 if role == 0 else 12
    depth = nbuf - 1
    per = 3 * nm

    def issue(kk):
        for mi, srd in enumerate(mats):
            for q in range(3):
                A.I("s_add_u32", M0, S_L0, (kk % nbuf) * cb + mi * 12288 + q * 1024)
                A.I("buffer_load_dwordx4", doff[q], srd, S_OFF, mods="offen lds")
        A.I("s_add_u32", S_OFF, S_OFF, 32 * L.HD * 2)

    def dest(kk, j):
        if role == 0:
            return frag_reg(kk * 5 + j) if j < 5 else v(16 + 4 * kk, 4)
        return frag_reg(kk * 2 + j) if j < 2 else v(16 + 4 * kk, 4)

    for kk in range(depth):
        issue(kk)
    for kk in range(20):
        younger = min(kk + depth - 1, 19) - kk
        A.I("s_waitcnt", f"vmcnt({younger * per})")
        A.I("s_barrier")
        if kk + depth < 20:
            issue(kk + depth)
        A.I("v_add_u32", tb, (kk % nbuf) * cb, base)
        for mi in range(nm):
            for tt in range(3):
                d = dest(kk, mi * 3 + tt)
                for u in range(2):
                    A.I("ds_read_b64_tr_b16", d[2 * u:2 * u + 2], tb,
                        mods=f"offset:{mi * 12288 + u * 1536 + tt * 32}")
        A.I("s_waitcnt", "lgkmcnt(0)")
    A.I("s_barrier")
    if role == 1:
        A.I("s_mul_i32", S_T[0], S_WAVE, 10 * 1024)
        A.I("v_lshlrev_b32", doff[0], 4, v(1))
        A.I("v_add_u32", doff[0], S_T[0], doff[0])
        A.I("s_mul_i32", S_OFF, SR_H, L.DH * L.D * 2)
        A.I("s_mul_i32", S_L0, S_WAVE, 10 * 1024)
        A.I("v_lshl_add_u32", base, g, 3, r4)
        A.I("v_mul_u32_u24", base, 1280, base)
        A.I("v_lshl_add_u32", base, c4, 3, base)
        A.I("s_mul_i32", S_T[0], S_WAVE, 320)
        A.I("v_add_u32", base, S_T[0], base)

        def issue2(ks):
            for q in range(10):
                A.I("s_add_u32", M0, S_L0, (ks % 4) * 40960 + q * 1024)
                A.I("s_add_u32", S_T[0], S_OFF, q * 1024)
                A.I("buffer_load_dwordx4", doff[0], S_WO, S_T[0], mods="offen lds")
            A.I("s_add_u32", S_OFF, S_OFF, 40960)

        for ks in range(3):
            issue2(ks)
        for ks in range(6):
            younger = min(ks + 2, 5) - ks
            A.I("s_waitcnt", f"vmcnt({younger * 10})")
            A.I("s_barrier")
            if ks + 3 < 6:
                issue2(ks + 3)
            A.I("v_add_u32", tb, (ks % 4) * 40960, base)
            for tt in range(10):
                d = frag_reg(40 + tt * 6 + ks)
                for u in range(2):
                    A.I("ds_read_b64_tr_b16", d[2 * u:2 * u + 2], tb, mods=f"offset:{u * 5120 + tt * 32}")
            A.I("s_waitcnt", "lgkmcnt(0)")
        A.I("s_barrier")
    for kk in range(20):
        A.I("ds_write_b128", R_LW, v(16 + 4 * kk, 4), mods=f"offset:{kk * 1024}")
    A.I("s_waitcnt", "lgkmcnt(0)")


def sentinel_check(A, regs, tmp):
    regs = list(regs)
    A.I("v_max3_u32", tmp, regs[0], regs[1], regs[2])
    k = 3
    while k + 1 < len(regs):
        A.I("v_max3_u32", tmp, tmp, regs[k], regs[k + 1])
        k += 2
    if k < len(regs):
        A.I("v_max_u32", tmp, tmp, regs[k])
    A.I("v_cmp_eq_u32", VCC, -1, tmp)


def rec_gather_mem(A, tag):
    lp = A.newlabel("gm" + tag)
    dn = A.newlabel("gmd" + tag)
    S0, S1 = SR_A[0], SR_A[1]
    A.I("s_mul_i32", S0, SR_S, L.MEM_STEP)
    A.I("s_add_u32", S0, S0, L.WS_MEM)
    A.I("s_add_u32", S1, S0, 4096)
    A.I("s_mov_b32", SR_CNT, 0)
    G = v(16, 12)
    A.label(lp)
    A.I("buffer_load_dwordx4", G[0:4], R_G0, S_WS, S0, mods="offen sc1")
    A.I("buffer_load_dwordx4", G[4:8], R_G0, S_WS, S1, mods="offen sc1")
    A.I("buffer_load_dwordx4", G[8:12], R_G2, S_WS, S0, mods="offen sc1")
    A.I("s_waitcnt", "vmcnt(0)")
    sentinel_check(A, [G[i] for i in range(12)], R_T[0])
    A.I("s_cbranch_vccz", dn)
    A.I("s_add_u32", SR_CNT, SR_CNT, 1)
    A.I("s_cmp_lt_u32", SR_CNT, 1 << 20)
    A.I("s_cbranch_scc1", lp)
    A.label(dn)
    A.I("ds_write_b128", R_G0, G[0:4], mods=f"offset:{LMEM}")
    A.I("ds_write_b128", R_G0, G[4:8], mods=f"offset:{LMEM + 4096}")
    A.I("ds_write_b128", R_G2, G[8:12], mods=f"offset:{LMEM}")
    A.I("s_waitcnt", "lgkmcnt(0)")
    A.I("s_barrier")


def proj_loop(A, ntile_reg, frag_of, accs):
    def rd(kk):
        A.I("ds_read_b128", R_BR[4 * (kk % 4):4 * (kk % 4) + 4], R_BRD, mods=f"offset:{LMEM + kk * 512}")
        A.I("ds_read_b128", R_WR[4 * (kk % 4):4 * (kk % 4) + 4], R_LW, mods=f"offset:{kk * 1024}")
    for kk in range(3):
        rd(kk)
    for kk in range(20):
        out = min(kk + 2, 19) - kk
        A.I("s_waitcnt", f"lgkmcnt({2 * out})")
        b = R_BR[4 * (kk % 4):4 * (kk % 4) + 4]
        for j in range(ntile_reg + 1):
            w = frag_of(kk, j) if j < ntile_reg else R_WR[4 * (kk % 4):4 * (kk % 4) + 4]
            A.I("v_mfma_f32_16x16x32_bf16", accs[j], w, b, accs[j] if kk else 0)
            if j == 0 and kk + 3 < 20:
                rd(kk + 3)


def rec_prefetch_z(A):
    S0 = SR_A[2]
    A.I("s_mul_i32", S0, SR_S, L.ZT_STEP)
    A.I("s_add_u32", S0, S0, L.WS_ZT)
    A.I("s_lshl_b32", S_T[0], S_WAVE, 13)
    A.I("s_add_u32", S_T[0], S_T[0], LZ)
    for hh in range(8):
        A.I("s_add_u32", M0, S_T[0], hh * 1024)
        A.I("buffer_load_dwordx4", R_Z, S_WS, S0, mods="offen sc1 lds")
        if hh < 7:
            A.I("s_add_u32", S0, S0, L.ZT_HEAD)


SCALE_L2E = (192 ** -0.5) * 1.4426950408889634


def rec_phaseA_qk(A):
    S0, S1 = SR_A[3], SR_A[4]
    KXF = lambda j, t: R_X[2 * (3 * j + t):2 * (3 * j + t) + 2]
    QF = lambda t: R_X[12 + 2 * t:12 + 2 * t + 2]
    KF = lambda t: R_X[18 + 2 * t:18 + 2 * t + 2]
    A.I("s_mul_i32", S0, SR_S, 32 * L.HD * 2)
    A.I("s_add_u32", S0, S0, L.WS_KX)
    A.I("s_add_u32", S1, S0, 16 * L.HD * 2)
    for j in range(2):
        for t in range(3):
            A.I("buffer_load_dwordx2", KXF(j, t), R_KX, S_WS, S1 if j else S0, mods=f"offen offset:{32 * t} sc1")
    accs = [R_ACC[4 * j:4 * j + 4] for j in range(6)]
    proj_loop(A, 5, lambda kk, j: frag_reg(kk * 5 + j), accs)
    for t in range(3):
        A.I("v_cvt_pk_bf16_f32", QF(t)[0], accs[t][0], accs[t][1])
        A.I("v_cvt_pk_bf16_f32", QF(t)[1], accs[t][2], accs[t][3])
        A.I("v_cvt_pk_bf16_f32", KF(t)[0], accs[3 + t][0], accs[3 + t][1])
        A.I("v_cvt_pk_bf16_f32", KF(t)[1], accs[3 + t][2], accs[3 + t][3])
    A.I("s_waitcnt", "vmcnt(0)")
    SC = [R_ACC[24 + 4 * i:28 + 4 * i] for i in range(3)]
    for t in range(3):
        A.I("v_mfma_f32_16x16x16_bf16", SC[0], KF(t), QF(t), SC[0] if t else 0)
        A.I("v_mfma_f32_16x16x16_bf16", SC[1], KXF(0, t), QF(t), SC[1] if t else 0)
        A.I("v_mfma_f32_16x16x16_bf16", SC[2], KXF(1, t), QF(t), SC[2] if t else 0)
    A.I("s_mul_i32", S0, SR_S, L.KM_STEP)
    A.I("s_mul_i32", S1, SR_H, L.KM_HEAD)
    A.I("s_add_u32", S0, S0, S1)
    A.I("s_add_u32", S0, S0, L.WS_KM)
    A.I("s_mov_b64", EXEC, SR_M8)
    for t in range(3):
        A.I("buffer_store_dwordx2", KF(t), R_ST, S_WS, S0, mods=f"offen offset:{32 * t} sc1")
    A.I("s_mov_b64", EXEC, -1)
    for i in range(3):
        A.I("ds_write_b128", R_LDS1, SC[i], mods=f"offset:{64 * i}")
    A.I("s_waitcnt", "lgkmcnt(0)")
    A.I("s_barrier")
    sk = A.newlabel("qksk")
    A.I("s_cmp_lg_u32", S_WAVE, 0)
    A.I("s_cbranch_scc1", sk)
    PR = v(16, 32)
    for wv in range(4):
        for hf in range(2):
            A.I("ds_read_b128", PR[8 * wv + 4 * hf:8 * wv + 4 * hf + 4], R_LDS2, mods=f"offset:{wv * 3072 + 16 * hf}")
    X = [v(48 + i) for i in range(8)]
    mx, t1, t2 = v(56), v(57), v(58)
    A.I("v_and_b32", t2, 7, v(1))
    A.I("v_cmp_gt_u32", VCC, 5, t2)
    A.I("s_mov_b32", S0, f32bits(SCALE_L2E))
    A.I("v_mov_b32", t1, 0xff800000)
    A.I("s_waitcnt", "lgkmcnt(0)")
    for i in range(8):
        A.I("v_add_f32", X[i], PR[i], PR[8 + i])
        A.I("v_add_f32", t2, PR[16 + i], PR[24 + i])
        A.I("v_add_f32", X[i], X[i], t2)
        A.I("v_mul_f32", X[i], S0, X[i])
        A.I("v_cndmask_b32", X[i], t1, X[i], VCC)
    A.I("v_max3_f32", mx, X[0], X[1], X[2])
    A.I("v_max3_f32", mx, mx, X[3], X[4])
    A.I("v_max3_f32", mx, mx, X[5], X[6])
    A.I("v_max_f32", mx, mx, X[7])
    for m in ("quad_perm:[1,0,3,2]", "quad_perm:[2,3,0,1]", "row_half_mirror"):
        A.I("v_max_f32_dpp", t1, mx, mx, mods=m + " row_mask:0xf bank_mask:0xf")
        A.I("v_mov_b32", mx, t1)
    for i in range(8):
        A.I("v_sub_f32", X[i], X[i], mx)
        A.I("v_exp_f32", X[i], X[i])
    sm = mx
    A.I("v_add_f32", sm, X[0], X[1])
    for i in range(2, 8):
        A.I("v_add_f32", sm, sm, X[i])
    for m in ("quad_perm:[1,0,3,2]", "quad_perm:[2,3,0,1]", "row_half_mirror"):
        A.I("v_add_f32_dpp", t1, sm, sm, mods=m + " row_mask:0xf bank_mask:0xf")
        A.I("v_mov_b32", sm, t1)
    A.I("v_rcp_f32", sm, sm)
    PK = v(60, 4)
    for i in range(8):
        A.I("v_mul_f32", X[i], X[i], sm)
    for i in range(4):
        A.I("v_cvt_pk_bf16_f32", PK[i], X[2 * i], X[2 * i + 1])
    A.I("v_lshrrev_b32", t1, 3, v(1))
    A.I("v_mul_u32_u24", t1, 80, t1)
    A.I("v_and_b32", t2, 7, v(1))
    A.I("v_lshl_add_u32", t1, t2, 4, t1)
    A.I("s_mul_i32", S0, SR_S, L.PM_STEP)
    A.I("s_mul_i32", S1, SR_H, L.PM_HEAD)
    A.I("s_add_u32", S0, S0, S1)
    A.I("s_add_u32", S0, S0, L.WS_PM)
    A.I("s_mov_b32", SR_P[0], 0x1f1f1f1f)
    A.I("s_mov_b32", SR_P[1], 0x1f1f1f1f)
    A.I("s_mov_b64", EXEC, SR_P)
    A.I("buffer_store_dwordx4", PK, t1, S_WS, S0, mods="offen sc1")
    A.I("s_mov_b64", EXEC, -1)
    A.label(sk)


def rec_phaseA_vo(A):
    S0, S1 = SR_A[3], SR_A[4]
    accs = [R_ACC[4 * j:4 * j + 4] for j in range(3)]
    proj_loop(A, 2, lambda kk, j: frag_reg(kk * 2 + j), accs)
    for t in range(3):
        pk = R_ACC[12 + 2 * t:14 + 2 * t]
        A.I("v_cvt_pk_bf16_f32", pk[0], accs[t][0], accs[t][1])
        A.I("v_cvt_pk_bf16_f32", pk[1], accs[t][2], accs[t][3])
        A.I("ds_write_b64", R_LDS1, pk, mods=f"offset:{32 * t}")
    A.I("s_waitcnt", "lgkmcnt(0)")
    A.I("s_barrier")
    for ks in range(6):
        A.I("ds_read_b128", R_X[4 * ks:4 * ks + 4], R_LDS2, mods=f"offset:{64 * ks}")
    A.I("s_mul_i32", S0, SR_S, L.YT_STEP)
    A.I("s_mul_i32", S1, SR_H, L.YT_HEAD)
    A.I("s_add_u32", S0, S0, S1)
    A.I("s_add_u32", S0, S0, L.WS_YT)
    A.I("s_mov_b32", S1, 0xfffeffff)
    ya = [R_ACC[4 * t:4 * t + 4] for t in range(10)]
    for ks in range(6):
        A.I("s_waitcnt", f"lgkmcnt({5 - ks})")
        for t in range(10):
            A.I("v_mfma_f32_16x16x32_bf16", ya[t], R_X[4 * ks:4 * ks + 4], frag_reg(40 + t * 6 + ks),
                ya[t] if ks else 0)
    A.I("s_mov_b32", SR_P[0], -1)
    A.I("s_mov_b32", SR_P[1], 0)
    A.I("s_mov_b64", EXEC, SR_P)
    for t in range(10):
        pk = v(16 + 2 * t, 2)
        A.I("v_cvt_pk_bf16_f32", pk[0], ya[t][0], ya[t][1])
        A.I("v_cvt_pk_bf16_f32", pk[1], ya[t][2], ya[t][3])
        A.I("v_min_u32", pk[0], S1, pk[0])
        A.I("v_min_u32", pk[1], S1, pk[1])
        A.I("buffer_store_dwordx2", pk, R_ST, S_WS, S0, mods=f"offen offset:{256 * t} sc1")
    A.I("s_mov_b64", EXEC, -1)


def rec_phaseB(A):
    S0, S1, S2, S3 = SR_A[3], SR_A[4], SR_A[5], SR_A[6]
    lp = A.newlabel("gb")
    dn = A.newlabel("gbd")
    A.I("s_mul_i32", S0, SR_S, L.PM_STEP)
    A.I("s_add_u32", S0, S0, L.WS_PM)
    A.I("s_add_u32", S3, S0, 4 * L.PM_HEAD)
    A.I("s_mul_i32", S1, SR_S, L.YT_STEP)
    A.I("s_add_u32", S1, S1, L.WS_YT)
    A.I("s_add_u32", S2, SR_S, 1)
    A.I("s_lshr_b32", S2, S2, 2)
    A.I("s_min_u32", S2, S2, 15)
    A.I("s_lshl_b32", S2, S2, 7)
    A.I("s_add_u32", S2, S2, L.FL_KZ * 128)
    A.I("s_add_u32", SR_A[7], S1, 4 * L.YT_HEAD)
    A.I("s_mov_b32", SR_CNT, 0)
    G = v(16, 48)
    FL = v(64)
    A.label(lp)
    for hh in range(8):
        A.I("buffer_load_dwordx4", G[4 * hh:4 * hh + 4], R_PZ, S_WS, S3 if hh >= 4 else S0,
            mods=f"offen offset:{(hh % 4) * L.PM_HEAD} sc1")
    for q in range(2):
        A.I("buffer_load_dwordx4", G[32 + 4 * q:36 + 4 * q], R_PM, S_WS, S3 if q else S0, mods="offen sc1")
    for q in range(2):
        A.I("buffer_load_dwordx4", G[40 + 4 * q:44 + 4 * q], R_Y, S_WS, SR_A[7] if q else S1, mods="offen sc1")
    A.I("buffer_load_dword", FL, OFF, S_WS, S2, mods="sc1")
    A.I("s_waitcnt", "vmcnt(0)")
    sentinel_check(A, [G[i] for i in range(48)], R_T[0])
    A.I("v_cmp_gt_u32", SR_P, 64, FL)
    A.I("s_or_b64", VCC, VCC, SR_P)
    A.I("s_cbranch_vccz", dn)
    A.I("s_add_u32", SR_CNT, SR_CNT, 1)
    A.I("s_cmp_lt_u32", SR_CNT, 1 << 20)
    A.I("s_cbranch_scc1", lp)
    A.label(dn)
    ZF = v(68, 32)
    A.I("s_lshl_b32", S_T[0], S_WAVE, 13)
    A.I("v_lshlrev_b32", R_T[0], 4, v(1))
    A.I("v_add_u32", R_T[0], S_T[0], R_T[0])
    for hh in range(8):
        A.I("ds_read_b128", ZF[4 * hh:4 * hh + 4], R_T[0], mods=f"offset:{LZ + hh * 1024}")
    acc = v(100, 4)
    for q in range(2):
        A.I("v_mfma_f32_16x16x32_bf16", acc, G[40 + 4 * q:44 + 4 * q], G[32 + 4 * q:36 + 4 * q], acc if q else 0)
    for hh in range(8):
        A.I("s_waitcnt", f"lgkmcnt({7 - hh})")
        A.I("v_mfma_f32_16x16x32_bf16", acc, ZF[4 * hh:4 * hh + 4], G[4 * hh:4 * hh + 4], acc)
    A.I("s_lshl_b32", S_T[0], S_WAVE, 10)
    A.I("v_lshlrev_b32", R_T[1], 4, v(1))
    A.I("v_add_u32", R_T[0], S_T[0], R_T[1])
    A.I("ds_write_b128", R_T[0], acc, mods=f"offset:{LRED2}")
    A.I("s_waitcnt", "lgkmcnt(0)")
    A.I("s_barrier")
    sk = A.newlabel("cbsk")
    A.I("s_cmp_lg_u32", S_WAVE, 0)
    A.I("s_cbranch_scc1", sk)
    O = v(16, 12)
    for wv in range(3):
        A.I("ds_read_b128", O[4 * wv:4 * wv + 4], R_T[1], mods=f"offset:{LRED2 + 1024 * (wv + 1)}")
    t1, t2 = v(28), v(29)
    A.I("v_lshrrev_b32", t1, 5, v(1))
    A.I("v_lshlrev_b32", t1, 7, t1)
    A.I("v_and_b32", t2, 15, v(1))
    A.I("v_lshl_add_u32", t1, t2, 4, t1)
    A.I("v_bfe_u32", t2, v(1), 4, 1)
    A.I("v_lshl_add_u32", t1, t2, 3, t1)
    A.I("s_add_u32", S0, SR_S, 1)
    A.I("s_mul_i32", S0, S0, L.MEM_STEP)
    A.I("s_lshl_b32", S1, SR_G0, 7)
    A.I("s_add_u32", S0, S0, S1)
    A.I("s_add_u32", S0, S0, L.WS_MEM)
    A.I("s_mov_b32", S1, 0xfffeffff)
    A.I("s_waitcnt", "lgkmcnt(0)")
    for i in range(4):
        A.I("v_add_f32", O[i], O[i], O[4 + i])
        A.I("v_add_f32", t2, O[8 + i], acc[i])
        A.I("v_add_f32", O[i], O[i], t2)
    pk = v(30, 2)
    A.I("v_cvt_pk_bf16_f32", pk[0], O[0], O[1])
    A.I("v_cvt_pk_bf16_f32", pk[1], O[2], O[3])
    A.I("v_min_u32", pk[0], S1, pk[0])
    A.I("v_min_u32", pk[1], S1, pk[1])
    A.I("s_mov_b64", EXEC, SR_MSK)
    A.I("buffer_store_dwordx2", pk, t1, S_WS, S0, mods="offen sc1")
    A.I("s_mov_b64", EXEC, -1)
    A.I("s_waitcnt", "vmcnt(0)")
    A.label(sk)
    A.I("s_barrier")


def recurrence(A):
    A.I("s_and_b32", SR_H, s(2), 31)
    A.I("s_lshr_b32", SR_ROLE, s(2), 5)
    rec_init_common(A)
    A.I("s_cmp_lg_u32", SR_ROLE, 0)
    A.I("s_cbranch_scc1", "r_init_vo")
    rec_init_role(A, 0)
    rec_load_weights(A, 0)
    A.I("s_branch", "r_start")
    A.label("r_init_vo")
    rec_init_role(A, 1)
    rec_load_weights(A, 1)
    A.label("r_start")
    A.I("s_mov_b32", SR_S, 0)
    A.I("s_mov_b32", SR_A[0], L.FL_KZ * 128)
    spin_flag(A, SR_A[0], 64, R_T[0], [S_T[0], S_T[1]], "kz0")
    A.label("r_loop")
    rec_gather_mem(A, "a")
    rec_prefetch_z(A)
    A.I("s_cmp_lg_u32", SR_ROLE, 0)
    A.I("s_cbranch_scc1", "r_vo")
    rec_phaseA_qk(A)
    A.I("s_branch", "r_pub")
    A.label("r_vo")
    rec_phaseA_vo(A)
    A.label("r_pub")
    A.I("s_lshl_b32", SR_A[0], SR_S, 7)
    A.I("s_add_u32", SR_A[0], SR_A[0], L.FL_REC * 128)
    signal_flag(A, SR_A[0], R_T[0], "r")
    A.I("s_cmp_eq_u32", SR_S, 63)
    A.I("s_cbranch_scc1", "k_exit")
    rec_phaseB(A)
    A.I("s_add_u32", SR_S, SR_S, 1)
    A.I("s_branch", "r_loop")
```

```python
import sys
from asmdsl import *
import layout as L

from common import *
import rec

def gen_prep(A):
    done = "prep_done"
    A.I("s_cmp_ge_u32", s(2), 256)
    A.I("s_cbranch_scc1", done)
    prologue(A)
    A.I("s_lshl_b32", S_T[0], s(2), 2)
    A.I("s_add_u32", S_T[0], S_T[0], S_WAVE)
    A.I("s_lshl_b32", S_T[0], S_T[0], 1)
    A.I("s_mul_i32", S_T[0], S_T[0], L.D * 2)
    A.I("v_lshlrev_b32", v(2), 2, v(1))
    for rr in range(2):
        base = 4 + rr * 5
        for j in range(5):
            A.I("buffer_load_dword", v(base + j), v(2), S_X, S_T[0], mods=f"offen offset:{rr * 1280 + j * 256}")
    A.I("s_add_u32", S_T[1], S_T[0], L.WS_XN)
    for rr in range(2):
        base = 4 + rr * 5
        A.I("s_waitcnt", f"vmcnt({5 if rr == 0 else 0})")
        xs = [v(20 + j) for j in range(10)]
        for j in range(5):
            A.I("v_lshlrev_b32", xs[2 * j], 16, v(base + j))
            A.I("v_and_b32", xs[2 * j + 1], 0xffff0000, v(base + j))
        acc, tmp = v(30), v(31)
        A.I("v_add_f32", acc, xs[0], xs[1])
        for j in range(2, 10):
            A.I("v_add_f32", acc, acc, xs[j])
        row_sum_all(A, acc, tmp, [S_T[2], S_T[3], S_T[4], S_T[5]])
        mean = v(32)
        A.I("v_mul_f32", mean, f32bits(1.0 / 640), acc)
        A.I("v_sub_f32", tmp, xs[0], mean)
        A.I("v_mul_f32", acc, tmp, tmp)
        for j in range(1, 10):
            A.I("v_sub_f32", tmp, xs[j], mean)
            A.I("v_fmac_f32", acc, tmp, tmp)
        row_sum_all(A, acc, tmp, [S_T[2], S_T[3], S_T[4], S_T[5]])
        var = v(33)
        A.I("v_mul_f32", var, f32bits(1.0 / 640), acc)
        bf16_round(A, mean, mean)
        bf16_round(A, var, var)
        A.I("v_add_f32", var, f32bits(1e-5), var)
        bf16_round(A, var, var)
        A.I("v_sqrt_f32", var, var)
        bf16_round(A, var, var)
        rcp = v(34)
        A.I("v_rcp_f32", rcp, var)
        for j in range(10):
            d = xs[j]
            A.I("v_sub_f32", d, d, mean)
            bf16_round(A, d, d)
            A.I("v_mul_f32", tmp, d, rcp)
            A.I("v_fma_f32", d, "-" + str(tmp), var, d)
            A.I("v_fma_f32", d, d, rcp, tmp)
        for j in range(5):
            A.I("v_cvt_pk_bf16_f32", v(base + j), xs[2 * j], xs[2 * j + 1])
            A.I("buffer_store_dword", v(base + j), v(2), S_WS, S_T[1], mods=f"offen offset:{rr * 1280 + j * 256}")
    A.I("s_lshl_b32", S_T[0], s(2), 8)
    A.I("v_add_u32", v(3), S_T[0], v(0))
    A.I("v_lshlrev_b32", v(3), 4, v(3))
    for j in range(4):
        A.I("v_mov_b32", v(40 + j), -1)
        A.I("v_mov_b32", v(44 + j), 0)
    nfill = L.WS_FILL1 - L.WS_FILL0
    npass = (nfill + (1 << 20) - 1) >> 20
    A.I("s_mov_b32", S_T[0], L.WS_FILL0)
    A.I("s_mov_b32", S_T[1], 0)
    A.I("s_mov_b32", s(96), S_WS[0])
    A.I("s_mov_b32", s(97), S_WS[1])
    A.I("s_mov_b32", s(98), L.WS_FILL1)
    A.I("s_mov_b32", s(99), 0x00020000)
    A.label("prep_fill")
    A.I("buffer_store_dwordx4", v(40, 4), v(3), s(96, 4), S_T[0], mods="offen")
    A.I("s_add_u32", S_T[0], S_T[0], 1 << 20)
    A.I("s_add_u32", S_T[1], S_T[1], 1)
    A.I("s_cmp_lt_u32", S_T[1], npass)
    A.I("s_cbranch_scc1", "prep_fill")
    A.I("s_mov_b32", s(98), L.FLAGS_BYTES)
    A.I("buffer_store_dwordx4", v(44, 4), v(3), s(96, 4), 0, mods="offen")
    A.I("s_cmp_ge_u32", s(2), 3)
    A.I("s_cbranch_scc1", done)
    A.I("v_lshrrev_b32", v(4), 4, v(3))
    A.I("v_and_b32", v(5), 7, v(4))
    A.I("v_lshrrev_b32", v(6), 3, v(4))
    A.I("v_mul_u32_u24", v(5), 1280, v(5))
    A.I("v_lshl_add_u32", v(5), v(6), 4, v(5))
    A.I("v_cmp_gt_u32", VCC, 640, v(4))
    A.I("v_mov_b32", v(7), 0x7fffff00)
    A.I("v_cndmask_b32", v(5), v(7), v(5), VCC)
    A.I("buffer_load_dwordx4", v(8, 4), v(5), S_MEM0, 0, mods="offen")
    A.I("s_mov_b32", s(98), L.WS_MEM + L.MEM_STEP)
    A.I("s_mov_b32", S_T[0], L.WS_MEM)
    A.I("s_waitcnt", "vmcnt(0)")
    A.I("buffer_store_dwordx4", v(8, 4), v(3), s(96, 4), S_T[0], mods="offen")
    A.label(done)
    A.I("s_endpgm")


def emit_f_swz(A, dst, row, t1, wide):
    A.I("v_lshrrev_b32", t1, 1, row)
    A.I("v_xor_b32", t1, t1, row)
    A.I("v_and_b32", t1, 4, t1)
    if not wide:
        A.I("v_and_b32", dst, 2, row)
        A.I("v_or_b32", dst, dst, t1)
    else:
        A.I("v_and_b32", dst, 3, row)
        A.I("v_or_b32", dst, dst, t1)
        A.I("v_lshlrev_b32", dst, 1, dst)


def emit_dma_offsets(A, dst_regs, first_instr_s, spr, s_ld, t):
    sig, row, cs, f = t
    for q, d in enumerate(dst_regs):
        A.I("v_add_u32", sig, first_instr_s, v(1))
        if q:
            A.I("v_add_u32", sig, 64 * q, sig)
        if spr == 24:
            A.I("v_mul_u32_u24", row, 2731, sig)
            A.I("v_lshrrev_b32", row, 16, row)
            A.I("v_mul_u32_u24", cs, 24, row)
            A.I("v_sub_u32", cs, sig, cs)
        else:
            A.I("v_lshrrev_b32", row, 4, sig)
            A.I("v_and_b32", cs, 15, sig)
        emit_f_swz(A, f, row, sig, spr == 16)
        A.I("v_xor_b32", cs, cs, f)
        A.I("v_mul_lo_u32", d, row, s_ld)
        A.I("v_lshl_add_u32", d, cs, 4, d)


W_TMP = [v(2 + i) for i in range(14)]
W_BCUR = v(16, 16)
W_BLANE = v(32, 16)
W_DMA = v(48, 12)
W_XOFF = v(60, 2)
W_MISC = v(62, 2)
W_SET = [v(64, 48), v(112, 48)]
W_ACC = v(160, 96)
SW_J = s(64)
SW_LDW = s(65)
SW_WOFF = s(66)
SW_XOFF = s(67)
SW_LDX = s(68)
SW_N = s(69)
SW_I = s(70)
SW_SLOT = s(71)
SW_EPI = s(72)
SW_T0 = s(73)
SW_COL = s(74)
SW_OBASE = s(75)
SW_FLAG = s(76)
SW_H = s(77)
SW_A = [s(78 + i) for i in range(10)]


def gemm1(A, nt, tag):
    spr = 2 * nt
    wide = (spr == 16)
    stage_bytes = 64 * spr * 16
    ks_off = 32 * spr * 16
    nb = 8 if wide else 4
    ndma = stage_bytes // 1024 // 4
    T = W_TMP
    A.I("s_mul_i32", S_T[0], S_WAVE, ndma * 64)
    emit_dma_offsets(A, [W_DMA[q] for q in range(ndma)], S_T[0], spr, SW_LDW, T[0:4])
    g, r4, c4, row, f, t1, t2 = T[0:7]
    A.I("v_lshrrev_b32", g, 4, v(1))
    A.I("v_bfe_u32", r4, v(1), 2, 2)
    A.I("v_and_b32", c4, 3, v(1))
    for u in range(2):
        A.I("v_lshl_add_u32", row, g, 3, r4)
        if u:
            A.I("v_add_u32", row, 4, row)
        emit_f_swz(A, f, row, t1, wide)
        for tt in range(nb):
            d = W_BLANE[u * nb + tt]
            A.I("v_lshrrev_b32", t1, 1, c4)
            A.I("v_add_u32", t1, 2 * tt, t1)
            A.I("v_xor_b32", t1, t1, f)
            A.I("v_mul_u32_u24", t2, spr, row)
            A.I("v_add_u32", t1, t1, t2)
            A.I("v_and_b32", t2, 1, c4)
            A.I("v_lshlrev_b32", t2, 3, t2)
            A.I("v_lshl_add_u32", d, t1, 4, t2)
    for i in range(nt * 8):
        A.I("v_mov_b32", W_ACC[i], 0)

    def issue(stage_mod):
        A.I("s_mul_i32", S_T[0], S_WAVE, ndma * 1024)
        A.I("s_add_u32", S_T[0], S_T[0], stage_mod * stage_bytes)
        for q in range(ndma):
            A.I("s_add_u32", M0, S_T[0], q * 1024)
            A.I("buffer_load_dwordx4", W_DMA[q], S_W, SW_WOFF, mods="offen lds")
        for ks in range(2):
            for j in range(2):
                A.I("buffer_load_dwordx4", a(16 * stage_mod + 8 * ks + 4 * j, 4), W_XOFF[j], S_WS, SW_XOFF,
                    mods=f"offen offset:{64 * ks} sc1")
        A.I("s_lshl_b32", S_T[0], SW_LDW, 6)
        A.I("s_add_u32", SW_WOFF, SW_WOFF, S_T[0])
        A.I("s_add_u32", SW_XOFF, SW_XOFF, 128)

    per = ndma + 4

    def set_bases(slot):
        for i in range(2 * nb):
            A.I("v_add_u32", W_BCUR[i], slot * stage_bytes, W_BLANE[i])

    def reads(dst, ks):
        r = []
        for t in range(nt):
            for u in range(2):
                r.append(("ds_read_b64_tr_b16", dst[4 * t + 2 * u: 4 * t + 2 * u + 2], W_BCUR[u * nb + t % nb],
                          f"offset:{ks * ks_off + (t // nb) * 128}"))
        return r

    def phase(src, stage_mod, ks, rd):
        rd = list(rd)
        for t in range(nt):
            for j in range(2):
                acc = W_ACC[8 * t + 4 * j: 8 * t + 4 * j + 4]
                A.I("v_mfma_f32_16x16x32_bf16", acc, src[4 * t:4 * t + 4], a(16 * stage_mod + 8 * ks + 4 * j, 4), acc)
                for _ in range(2):
                    if rd:
                        o = rd.pop(0)
                        A.I(o[0], o[1], o[2], mods=o[3])
        assert not rd
        A.I("s_waitcnt", "lgkmcnt(0)")

    for st in range(3):
        issue(st)
    A.I("s_waitcnt", f"vmcnt({2 * per})")
    A.I("s_barrier")
    set_bases(0)
    for o in reads(W_SET[0], 0):
        A.I(o[0], o[1], o[2], mods=o[3])
    A.I("s_waitcnt", "lgkmcnt(0)")
    A.I("s_mov_b32", SW_I, 0)
    loop = f"g1loop{tag}"
    end = f"g1end{tag}"
    A.label(loop)
    for sm in range(4):
        l1 = A.newlabel("g1w")
        l2 = A.newlabel("g1x")
        l3 = A.newlabel("g1y")
        A.I("s_add_u32", S_T[1], SW_I, 2)
        A.I("s_cmp_lt_u32", S_T[1], SW_N)
        A.I("s_cbranch_scc1", l1)
        A.I("s_waitcnt", "vmcnt(0)")
        A.I("s_branch", l2)
        A.label(l1)
        A.I("s_waitcnt", f"vmcnt({per})")
        A.label(l2)
        A.I("s_barrier")
        A.I("s_add_u32", S_T[1], SW_I, 3)
        A.I("s_cmp_ge_u32", S_T[1], SW_N)
        A.I("s_cbranch_scc1", l3)
        issue((sm + 3) % 4)
        A.label(l3)
        phase(W_SET[0], sm, 0, reads(W_SET[1], 1))
        set_bases((sm + 1) % 4)
        phase(W_SET[1], sm, 1, reads(W_SET[0], 0))
        A.I("s_add_u32", SW_I, SW_I, 1)
        A.I("s_cmp_ge_u32", SW_I, SW_N)
        A.I("s_cbranch_scc1", end)
    A.I("s_branch", loop)
    A.label(end)


def emit_xoff(A):
    T = W_TMP
    A.I("v_and_b32", T[0], 15, v(1))
    A.I("v_lshrrev_b32", T[1], 2, T[0])
    A.I("v_and_b32", T[0], 3, T[0])
    A.I("v_lshl_add_u32", T[0], T[1], 3, T[0])
    A.I("s_lshl_b32", S_T[0], S_WAVE, 5)
    A.I("s_add_u32", S_T[0], S_T[0], SW_T0)
    A.I("v_add_u32", T[0], S_T[0], T[0])
    A.I("v_lshrrev_b32", T[1], 4, v(1))
    A.I("v_lshlrev_b32", T[1], 4, T[1])
    for j in range(2):
        A.I("v_add_u32", W_MISC[j], 4 * j, T[0])
        A.I("v_mul_lo_u32", W_XOFF[j], W_MISC[j], SW_LDX)
        A.I("v_add_u32", W_XOFF[j], W_XOFF[j], T[1])


def epi_store_rows(A, nt, ldo, post=None):
    T = W_TMP
    A.I("v_lshrrev_b32", T[0], 4, v(1))
    A.I("v_lshlrev_b32", T[0], 3, T[0])
    off = [T[1], T[2]]
    for j in range(2):
        A.I("v_mul_u32_u24", off[j], ldo, W_MISC[j])
        A.I("v_add_u32", off[j], off[j], T[0])
    A.I("s_lshl_b32", S_T[0], SW_COL, 1)
    A.I("s_add_u32", S_T[0], S_T[0], SW_OBASE)
    for t in range(nt):
        for j in range(2):
            acc = W_ACC[8 * t + 4 * j: 8 * t + 4 * j + 4]
            vals = [acc[i] for i in range(4)]
            if post:
                post(vals, t)
            pk = v(64 + ((2 * t + j) % 8) * 2, 2)
            A.I("v_cvt_pk_bf16_f32", pk[0], vals[0], vals[1])
            A.I("v_cvt_pk_bf16_f32", pk[1], vals[2], vals[3])
            A.I("buffer_store_dwordx2", pk, off[j], S_WS, S_T[0], mods=f"offen offset:{32 * t} sc1")


def load_bias(A, srd, nt, dst):
    T = W_TMP
    A.I("v_lshrrev_b32", T[3], 4, v(1))
    A.I("v_lshlrev_b32", T[3], 3, T[3])
    A.I("s_lshl_b32", S_T[1], SW_COL, 1)
    for t in range(nt):
        A.I("buffer_load_dwordx2", v(128 + 2 * t, 2), T[3], srd, S_T[1], mods=f"offen offset:{32 * t}")
    A.I("s_waitcnt", "vmcnt(0)")
    for t in range(nt):
        for p in range(2):
            A.I("v_lshlrev_b32", dst[4 * t + 2 * p], 16, v(128 + 2 * t + p))
            A.I("v_and_b32", dst[4 * t + 2 * p + 1], 0xffff0000, v(128 + 2 * t + p))


LOG2E = 1.4426950408889634


def worker(A, nw, jlo, jhi, wid_base):
    A.I("s_sub_u32", SW_J, s(2), wid_base)
    A.I("s_add_u32", SW_J, SW_J, jlo)
    A.I("s_branch", "w_dispatch")
    A.label("w_next")
    A.I("s_add_u32", SW_J, SW_J, nw)
    A.label("w_dispatch")
    A.I("s_cmp_ge_u32", SW_J, jhi)
    A.I("s_cbranch_scc1", "k_exit")
    A.I("s_barrier")
    A.I("s_cmp_ge_u32", SW_J, 1744)
    A.I("s_cbranch_scc1", "w_ph3")
    A.I("s_cmp_ge_u32", SW_J, 1664)
    A.I("s_cbranch_scc1", "w_ffn2")
    A.I("s_mov_b32", SW_LDX, L.D * 2)
    A.I("s_mov_b32", SW_XOFF, L.WS_XN)
    A.I("s_mov_b32", SW_N, 10)
    A.I("s_cmp_ge_u32", SW_J, 1536)
    A.I("s_cbranch_scc1", "w_ffn1")
    A.I("s_mov_b32", SW_LDW, L.HD * 2)
    A.I("s_cmp_ge_u32", SW_J, 1024)
    A.I("s_cbranch_scc1", "w_q")
    A.I("s_lshr_b32", S_T[0], SW_J, 6)
    A.I("s_lshl_b32", SW_T0, S_T[0], 7)
    A.I("s_lshl_b32", SW_FLAG, S_T[0], 7)
    A.I("s_add_u32", SW_FLAG, SW_FLAG, L.FL_KZ * 128)
    A.I("s_and_b32", SW_H, SW_J, 31)
    A.I("s_mul_i32", SW_COL, SW_H, L.DH)
    A.I("s_bitcmp1_b32", SW_J, 5)
    A.I("s_cbranch_scc1", "w_k")
    A.I("s_mov_b32", SW_EPI, 2)
    for i in range(4):
        A.I("s_mov_b32", S_W[i], S_WV[i])
    A.I("s_branch", "w_g12")
    A.label("w_k")
    A.I("s_mov_b32", SW_EPI, 0)
    A.I("s_mov_b32", SW_OBASE, L.WS_KX)
    for i in range(4):
        A.I("s_mov_b32", S_W[i], S_WK[i])
    A.I("s_branch", "w_g12")
    A.label("w_q")
    A.I("s_sub_u32", S_T[1], SW_J, 1024)
    A.I("s_lshr_b32", S_T[0], S_T[1], 5)
    A.I("s_lshl_b32", SW_T0, S_T[0], 7)
    A.I("s_lshl_b32", SW_FLAG, S_T[0], 7)
    A.I("s_add_u32", SW_FLAG, SW_FLAG, L.FL_Q * 128)
    A.I("s_and_b32", SW_H, S_T[1], 31)
    A.I("s_mul_i32", SW_COL, SW_H, L.DH)
    A.I("s_mov_b32", SW_EPI, 0)
    A.I("s_mov_b32", SW_OBASE, L.WS_QX)
    for i in range(4):
        A.I("s_mov_b32", S_W[i], S_WQ[i])
    A.I("s_branch", "w_g12")
    A.label("w_ffn1")
    A.I("s_sub_u32", S_T[1], SW_J, 1536)
    A.I("s_lshr_b32", S_T[0], S_T[1], 3)
    A.I("s_lshl_b32", SW_T0, S_T[0], 7)
    A.I("s_lshl_b32", SW_FLAG, S_T[0], 7)
    A.I("s_add_u32", SW_FLAG, SW_FLAG, L.FL_F1 * 128)
    A.I("s_and_b32", SW_H, S_T[1], 7)
    A.I("s_mul_i32", SW_COL, SW_H, L.DH)
    A.I("s_mov_b32", SW_EPI, 1)
    A.I("s_mov_b32", SW_OBASE, L.WS_H1)
    A.I("s_mov_b32", SW_LDW, L.F * 2)
    for i in range(4):
        A.I("s_mov_b32", S_W[i], S_W1[i])
    A.label("w_g12")
    A.I("s_lshl_b32", SW_WOFF, SW_COL, 1)
    emit_xoff(A)
    A.I("s_cmp_lg_u32", SW_EPI, 2)
    A.I("s_cbranch_scc1", "w_g12b")
    vz_dma_setup(A)
    vz_issue_chunk(A, 98304)
    A.label("w_g12b")
    gemm1(A, 12, "a")
    A.I("s_cmp_eq_u32", SW_EPI, 2)
    A.I("s_cbranch_scc1", "w_vz2")
    A.I("s_cmp_eq_u32", SW_EPI, 1)
    A.I("s_cbranch_scc1", "w_epi_ffn1")
    epi_store_rows(A, 12, L.HD * 2)
    A.I("s_branch", "w_signal")
    A.label("w_epi_ffn1")
    bias = v(80, 48)
    load_bias(A, S_B1, 12, bias)
    T = W_TMP
    A.I("s_mov_b32", SW_A[0], f32bits(0.044715))
    A.I("s_mov_b32", SW_A[1], f32bits(-2.0 * 0.7978845608028654 * LOG2E))

    def post_gelu(vals, t):
        for i, x in enumerate(vals):
            bf16_round(A, x, x)
            A.I("v_add_f32", x, x, bias[4 * t + i])
            bf16_round(A, x, x)
            t1, t2 = T[4], T[5]
            A.I("v_mul_f32", t1, x, x)
            A.I("v_mul_f32", t1, SW_A[0], t1)
            A.I("v_fma_f32", t1, t1, x, x)
            A.I("v_mul_f32", t1, SW_A[1], t1)
            A.I("v_exp_f32", t1, t1)
            A.I("v_add_f32", t1, 1.0, t1)
            A.I("v_rcp_f32", t1, t1)
            A.I("v_mul_f32", x, x, t1)

    epi_store_rows(A, 12, L.F * 2, post_gelu)
    A.I("s_branch", "w_signal")
    A.label("w_vz2")
    vz_stage2(A)
    A.I("s_branch", "w_signal")
    A.label("w_ffn2")
    A.I("s_sub_u32", S_T[1], SW_J, 1664)
    A.I("s_mul_hi_u32", S_T[0], S_T[1], (1 << 32) // 5 + 1)
    A.I("s_mul_i32", S_T[2], S_T[0], 5)
    A.I("s_sub_u32", S_T[2], S_T[1], S_T[2])
    A.I("s_lshl_b32", SW_T0, S_T[0], 7)
    A.I("s_lshl_b32", SW_FLAG, S_T[0], 7)
    A.I("s_add_u32", SW_A[0], SW_FLAG, L.FL_F1 * 128)
    A.I("s_add_u32", SW_FLAG, SW_FLAG, L.FL_G * 128)
    A.I("s_lshl_b32", SW_COL, S_T[2], 7)
    A.I("s_mov_b32", SW_OBASE, L.WS_G)
    A.I("s_mov_b32", SW_LDW, L.D * 2)
    A.I("s_mov_b32", SW_LDX, L.F * 2)
    A.I("s_mov_b32", SW_XOFF, L.WS_H1)
    A.I("s_mov_b32", SW_N, 24)
    for i in range(4):
        A.I("s_mov_b32", S_W[i], S_W2[i])
    spin_flag(A, SW_A[0], 8, W_TMP[0], [S_T[0], S_T[1]], "f1")
    A.I("s_lshl_b32", SW_WOFF, SW_COL, 1)
    emit_xoff(A)
    gemm1(A, 8, "b")
    load_bias(A, S_B2, 8, bias)
    A.I("s_mov_b32", SW_A[1], f32bits(-LOG2E))

    def post_silu(vals, t):
        for i, x in enumerate(vals):
            bf16_round(A, x, x)
            A.I("v_add_f32", x, x, bias[4 * t + i])
            bf16_round(A, x, x)
            t1 = T[4]
            A.I("v_mul_f32", t1, SW_A[1], x)
            A.I("v_exp_f32", t1, t1)
            A.I("v_add_f32", t1, 1.0, t1)
            A.I("v_rcp_f32", t1, t1)
            A.I("v_mul_f32", x, x, t1)

    epi_store_rows(A, 8, L.D * 2, post_silu)
    A.label("w_signal")
    signal_flag(A, SW_FLAG, W_TMP[0], "w")
    A.I("s_branch", "w_next")
    A.label("w_ph3")
    phase3(A)
    A.I("s_branch", "w_next")


VZ_DMA = a(128, 12)
SW_WOOFF = s(88)


def vz_dma_setup(A):
    T = W_TMP
    A.I("s_mul_i32", S_T[0], S_WAVE, 12 * 64)
    A.I("s_mov_b32", S_T[2], L.D * 2)
    emit_dma_offsets(A, [W_DMA[q] for q in range(12)], S_T[0], 16, S_T[2], T[0:4])
    for q in range(12):
        A.I("v_accvgpr_write_b32", VZ_DMA[q], W_DMA[q])
    A.I("s_mul_i32", SW_WOOFF, SW_H, L.DH * L.D * 2)


def vz_issue_chunk(A, region):
    A.I("s_mul_i32", S_T[0], S_WAVE, 12 * 1024)
    A.I("s_add_u32", S_T[0], S_T[0], region)
    for q in range(12):
        A.I("s_add_u32", M0, S_T[0], q * 1024)
        A.I("buffer_load_dwordx4", W_DMA[q], S_WO, SW_WOOFF, mods="offen lds")
    A.I("s_add_u32", SW_WOOFF, SW_WOOFF, 256)


def vz_stage2(A):
    T = W_TMP
    A.I("s_barrier")
    for q in range(12):
        A.I("v_accvgpr_read_b32", W_DMA[q], VZ_DMA[q])
    vz_issue_chunk(A, 0)
    vz_issue_chunk(A, 49152)
    VF = lambda j, TT: v(64 + (j * 6 + TT) * 4, 4)
    for j in range(2):
        for TT in range(6):
            for p in range(2):
                acc = W_ACC[8 * (2 * TT + p) + 4 * j: 8 * (2 * TT + p) + 4 * j + 4]
                A.I("v_cvt_pk_bf16_f32", VF(j, TT)[2 * p], acc[0], acc[1])
                A.I("v_cvt_pk_bf16_f32", VF(j, TT)[2 * p + 1], acc[2], acc[3])
    g, r4, c4, row, f, t1 = T[0:6]
    base0 = W_BLANE[0]
    A.I("v_lshrrev_b32", g, 4, v(1))
    A.I("v_bfe_u32", r4, v(1), 2, 2)
    A.I("v_and_b32", c4, 3, v(1))
    A.I("v_lshl_add_u32", row, g, 2, r4)
    emit_f_swz(A, f, row, t1, True)
    A.I("v_lshrrev_b32", t1, 1, c4)
    A.I("v_xor_b32", t1, t1, f)
    A.I("v_lshlrev_b32", base0, 8, row)
    A.I("v_lshl_add_u32", base0, t1, 4, base0)
    A.I("v_and_b32", t1, 1, c4)
    A.I("v_lshl_add_u32", base0, t1, 3, base0)
    zoff = W_BLANE[1]
    A.I("v_and_b32", t1, 15, v(1))
    A.I("v_lshlrev_b32", zoff, 6, t1)
    A.I("v_lshl_add_u32", zoff, g, 4, zoff)
    S_Z, S_C, S_REG = SW_A[0], SW_A[1], SW_A[2]
    A.I("s_lshr_b32", S_Z, SW_T0, 5)
    A.I("s_add_u32", S_Z, S_Z, S_WAVE)
    A.I("s_mul_i32", S_Z, S_Z, L.ZT_STEP)
    A.I("s_mul_i32", S_T[0], SW_H, L.ZT_HEAD)
    A.I("s_add_u32", S_Z, S_Z, S_T[0])
    A.I("s_add_u32", S_Z, S_Z, L.WS_ZT)
    A.I("s_mov_b32", S_C, 0)
    A.I("s_mov_b32", S_REG, 98304)
    BS = [v(112, 24), v(136, 24)]
    ACC = [v(160, 8), v(168, 8)]
    PK = [v(176, 4), v(180, 4)]
    bases = W_BCUR

    def rd(dst, t):
        r = []
        for TT in range(6):
            for u in range(2):
                r.append(("ds_read_b64_tr_b16", dst[4 * TT + 2 * u:4 * TT + 2 * u + 2], bases[t],
                          f"offset:{(32 * TT + 16 * u) * 256}"))
        return r

    def epi(t):
        acc = ACC[t & 1]
        pk = PK[t & 1]
        for j in range(2):
            A.I("v_cvt_pk_bf16_f32", pk[2 * j], acc[4 * j], acc[4 * j + 1])
            A.I("v_cvt_pk_bf16_f32", pk[2 * j + 1], acc[4 * j + 2], acc[4 * j + 3])
        A.I("buffer_store_dwordx4", pk, zoff, S_WS, S_Z, mods="offen sc1")
        A.I("s_add_u32", S_Z, S_Z, 1024)

    A.label("vz_chunk")
    A.I("s_waitcnt", "vmcnt(20)")
    lw = A.newlabel("vzw")
    A.I("s_cmp_lt_u32", S_C, 3)
    A.I("s_cbranch_scc1", lw)
    A.I("s_waitcnt", "vmcnt(8)")
    A.label(lw)
    A.I("s_barrier")
    li = A.newlabel("vzi")
    A.I("s_cmp_eq_u32", S_C, 0)
    A.I("s_cbranch_scc1", li)
    A.I("s_cmp_ge_u32", S_C, 3)
    A.I("s_cbranch_scc1", li)
    vz_issue_chunk(A, SW_A[3])
    A.label(li)
    for t in range(8):
        A.I("v_xor_b32", bases[t], 32 * t, base0)
        A.I("v_add_u32", bases[t], S_REG, bases[t])
    for o in rd(BS[0], 0):
        A.I(o[0], o[1], o[2], mods=o[3])
    for t in range(8):
        A.I("s_waitcnt", "lgkmcnt(0)")
        nxt = rd(BS[(t + 1) & 1], t + 1) if t < 7 else []
        acc = ACC[t & 1]
        k = 0
        for TT in range(6):
            for j in range(2):
                c = acc[4 * j:4 * j + 4] if TT else 0
                A.I("v_mfma_f32_16x16x32_bf16", acc[4 * j:4 * j + 4], VF(j, TT), BS[t & 1][4 * TT:4 * TT + 4], c)
                for _ in range(2):
                    if nxt:
                        o = nxt.pop(0)
                        A.I(o[0], o[1], o[2], mods=o[3])
                k += 1
                if k == 8 and t > 0:
                    epi(t - 1)
    epi(7)
    A.I("s_mov_b32", SW_A[3], S_REG)
    A.I("s_add_u32", S_REG, S_REG, 49152)
    A.I("s_cmp_ge_u32", S_REG, 147456)
    A.I("s_cselect_b32", S_REG, 0, S_REG)
    A.I("s_add_u32", S_C, S_C, 1)
    A.I("s_cmp_lt_u32", S_C, 5)
    A.I("s_cbranch_scc1", "vz_chunk")


def phase3(A):
    T = W_TMP
    S_S, S_R, S_H4 = SW_A[0], SW_A[1], SW_A[2]
    A.I("s_sub_u32", S_T[1], SW_J, 1744)
    A.I("s_mul_hi_u32", S_S, S_T[1], (1 << 32) // 13 + 1)
    A.I("s_mul_i32", S_T[2], S_S, 13)
    A.I("s_sub_u32", S_R, S_T[1], S_T[2])
    A.I("s_cmp_ge_u32", S_R, 8)
    A.I("s_cbranch_scc1", "w_out")
    A.I("s_lshr_b32", SW_A[3], S_S, 2)
    A.I("s_lshl_b32", SW_A[3], SW_A[3], 7)
    A.I("s_add_u32", SW_A[4], SW_A[3], L.FL_Q * 128)
    spin_flag(A, SW_A[4], 32, T[0], [S_T[0], S_T[1]], "aq")
    A.I("s_add_u32", SW_A[4], SW_A[3], L.FL_KZ * 128)
    spin_flag(A, SW_A[4], 64, T[0], [S_T[0], S_T[1]], "ak")
    A.I("s_lshl_b32", SW_A[3], S_S, 7)
    A.I("s_add_u32", SW_A[4], SW_A[3], L.FL_REC * 128)
    spin_flag(A, SW_A[4], 64, T[0], [S_T[0], S_T[1]], "ar")
    A.I("s_add_u32", SW_FLAG, SW_A[3], L.FL_ATT * 128)
    A.I("s_lshl_b32", SW_H, S_R, 2)
    A.I("s_add_u32", SW_H, SW_H, S_WAVE)
    g, m16, i8, okm, okx, oq, t1, t2 = T[0:8]
    A.I("v_lshrrev_b32", g, 4, v(1))
    A.I("v_and_b32", m16, 15, v(1))
    A.I("v_and_b32", i8, 7, v(1))
    A.I("v_mul_u32_u24", okm, 384, i8)
    A.I("v_lshl_add_u32", okm, g, 4, okm)
    A.I("v_lshrrev_b32", t1, 2, m16)
    A.I("v_and_b32", t2, 3, m16)
    A.I("v_lshl_add_u32", t1, t1, 3, t2)
    A.I("v_mul_u32_u24", okx, L.HD * 2, t1)
    A.I("v_lshl_add_u32", okx, g, 4, okx)
    A.I("v_mul_u32_u24", oq, L.HD * 2, m16)
    A.I("v_lshl_add_u32", oq, g, 4, oq)
    SKM, SKX0, SKX1, SQ0, SQ1 = SW_A[3], SW_A[4], SW_A[5], SW_A[6], SW_A[7]
    A.I("s_mul_i32", SKM, S_S, L.KM_STEP)
    A.I("s_mul_i32", S_T[0], SW_H, L.KM_HEAD)
    A.I("s_add_u32", SKM, SKM, S_T[0])
    A.I("s_add_u32", SKM, SKM, L.WS_KM)
    A.I("s_mul_i32", S_T[0], S_S, 32 * L.HD * 2)
    A.I("s_mul_i32", S_T[1], SW_H, L.DH * 2)
    A.I("s_add_u32", S_T[0], S_T[0], S_T[1])
    A.I("s_add_u32", SKX0, S_T[0], L.WS_KX)
    A.I("s_add_u32", SKX1, SKX0, 4 * L.HD * 2)
    A.I("s_add_u32", SQ0, S_T[0], L.WS_QX)
    A.I("s_add_u32", SQ1, SQ0, 16 * L.HD * 2)
    KF = lambda mt, TT: v(64 + (mt * 6 + TT) * 4, 4)
    QF = lambda j, TT: v(136 + (j * 6 + TT) * 4, 4)
    AC = lambda mt, j: v(184 + (mt * 2 + j) * 4, 4)
    for TT in range(6):
        A.I("buffer_load_dwordx4", KF(0, TT), okm, S_WS, SKM, mods=f"offen offset:{64 * TT} sc1")
        A.I("buffer_load_dwordx4", KF(1, TT), okx, S_WS, SKX0, mods=f"offen offset:{64 * TT} sc1")
        A.I("buffer_load_dwordx4", KF(2, TT), okx, S_WS, SKX1, mods=f"offen offset:{64 * TT} sc1")
        A.I("buffer_load_dwordx4", QF(0, TT), oq, S_WS, SQ0, mods=f"offen offset:{64 * TT} sc1")
        A.I("buffer_load_dwordx4", QF(1, TT), oq, S_WS, SQ1, mods=f"offen offset:{64 * TT} sc1")
    for TT in range(6):
        A.I("s_waitcnt", f"vmcnt({5 * (5 - TT)})")
        for j in range(2):
            for mt in range(3):
                A.I("v_mfma_f32_16x16x32_bf16", AC(mt, j), KF(mt, TT), QF(j, TT), AC(mt, j) if TT else 0)
    x16, x32, ninf, dd, mx = T[8], T[9], T[10], T[11], T[12]
    A.I("v_xor_b32", x16, 16, v(1))
    A.I("v_lshlrev_b32", x16, 2, x16)
    A.I("v_xor_b32", x32, 32, v(1))
    A.I("v_lshlrev_b32", x32, 2, x32)
    A.I("v_mov_b32", ninf, 0xff800000)
    A.I("s_mov_b32", S_T[2], f32bits(rec.SCALE_L2E))
    opz, opm = okm, okx
    A.I("v_lshlrev_b32", opz, 6, m16)
    A.I("v_lshl_add_u32", opz, g, 4, opz)
    A.I("v_lshlrev_b32", opm, 4, m16)
    A.I("v_lshl_add_u32", opm, g, 3, opm)
    SPZ, SPM = SW_A[3], SW_A[4]
    A.I("s_mul_i32", SPZ, S_S, L.PXZ_STEP)
    A.I("s_mul_i32", S_T[0], SW_H, L.PXZ_HEAD)
    A.I("s_add_u32", SPZ, SPZ, S_T[0])
    A.I("s_add_u32", SPZ, SPZ, L.WS_PXZ)
    A.I("s_mul_i32", SPM, S_S, L.PXM_STEP)
    A.I("s_mul_i32", S_T[0], SW_H, L.PXM_HEAD)
    A.I("s_add_u32", SPM, SPM, S_T[0])
    A.I("s_add_u32", SPM, SPM, L.WS_PXM)
    for j in range(2):
        X = [AC(mt, j)[r_] for mt in range(3) for r_ in range(4)]
        A.I("v_lshlrev_b32", t1, 3, g)
        A.I("v_sub_u32", dd, m16, t1)
        if j:
            A.I("v_add_u32", dd, 16, dd)
        A.I("v_cmp_gt_u32", VCC, 2, g)
        for k in range(12):
            A.I("v_mul_f32", X[k], S_T[2], X[k])
        for k in range(4):
            A.I("v_cndmask_b32", X[k], ninf, X[k], VCC)
        for k in range(4, 12):
            A.I("v_cmp_le_i32", VCC, k - 4, dd)
            A.I("v_cndmask_b32", X[k], ninf, X[k], VCC)
        A.I("v_max3_f32", mx, X[0], X[1], X[2])
        for k in range(3, 11, 2):
            A.I("v_max3_f32", mx, mx, X[k], X[k + 1])
        A.I("v_max_f32", mx, mx, X[11])
        for xa in (x16, x32):
            A.I("ds_bpermute_b32", t1, xa, mx)
            A.I("s_waitcnt", "lgkmcnt(0)")
            A.I("v_max_f32", mx, mx, t1)
        for k in range(12):
            A.I("v_sub_f32", X[k], X[k], mx)
            A.I("v_exp_f32", X[k], X[k])
        A.I("v_add_f32", mx, X[0], X[1])
        for k in range(2, 12):
            A.I("v_add_f32", mx, mx, X[k])
        for xa in (x16, x32):
            A.I("ds_bpermute_b32", t1, xa, mx)
            A.I("s_waitcnt", "lgkmcnt(0)")
            A.I("v_add_f32", mx, mx, t1)
        A.I("v_rcp_f32", mx, mx)
        for k in range(12):
            A.I("v_mul_f32", X[k], X[k], mx)
        pz = v(208 + 8 * j, 4)
        pm = v(212 + 8 * j, 2)
        for k in range(4):
            A.I("v_cvt_pk_bf16_f32", pz[k], X[4 + 2 * k], X[5 + 2 * k])
        A.I("v_cvt_pk_bf16_f32", pm[0], X[0], X[1])
        A.I("v_cvt_pk_bf16_f32", pm[1], X[2], X[3])
        A.I("buffer_store_dwordx4", pz, opz, S_WS, SPZ, mods=f"offen offset:{1024 * j} sc1")
        A.I("s_mov_b32", SW_A[8], -1)
        A.I("s_mov_b32", SW_A[9], 0)
        A.I("s_mov_b64", EXEC, s(SW_A[8].i, 2))
        A.I("buffer_store_dwordx2", pm, opm, S_WS, SPM, mods=f"offen offset:{256 * j} sc1")
        A.I("s_mov_b64", EXEC, -1)
    A.I("s_branch", "w_signal")
    A.label("w_out")
    A.I("s_sub_u32", S_R, S_R, 8)
    A.I("s_lshl_b32", SW_A[3], S_S, 7)
    A.I("s_add_u32", SW_A[4], SW_A[3], L.FL_ATT * 128)
    spin_flag(A, SW_A[4], 8, T[0], [S_T[0], S_T[1]], "oa")
    A.I("s_lshr_b32", SW_A[3], S_S, 2)
    A.I("s_lshl_b32", SW_A[3], SW_A[3], 7)
    A.I("s_add_u32", SW_A[4], SW_A[3], L.FL_G * 128)
    spin_flag(A, SW_A[4], 5, T[0], [S_T[0], S_T[1]], "og")
    g, m16, dc, oz, op_, oy, opm, t1 = T[0:8]
    A.I("v_lshrrev_b32", g, 4, v(1))
    A.I("v_and_b32", m16, 15, v(1))
    A.I("s_lshl_b32", S_T[0], S_R, 7)
    A.I("s_lshl_b32", S_T[1], S_WAVE, 5)
    A.I("s_add_u32", SW_COL, S_T[0], S_T[1])
    A.I("v_add_u32", dc, SW_COL, m16)
    A.I("v_lshlrev_b32", oz, 6, dc)
    A.I("v_lshl_add_u32", oz, g, 4, oz)
    A.I("v_lshlrev_b32", op_, 6, m16)
    A.I("v_lshl_add_u32", op_, g, 4, op_)
    A.I("v_mul_u32_u24", oy, L.YT_HEAD, g)
    A.I("v_lshl_add_u32", oy, dc, 4, oy)
    A.I("v_lshlrev_b32", opm, 9, g)
    A.I("v_lshl_add_u32", opm, m16, 4, opm)
    SZ, SP, SY, SPM2 = SW_A[3], SW_A[4], SW_A[5], SW_A[6]
    A.I("s_mul_i32", SZ, S_S, L.ZT_STEP)
    A.I("s_add_u32", SZ, SZ, L.WS_ZT)
    A.I("s_mul_i32", SP, S_S, L.PXZ_STEP)
    A.I("s_add_u32", SP, SP, L.WS_PXZ)
    A.I("s_mul_i32", SY, S_S, L.YT_STEP)
    A.I("s_add_u32", SY, SY, L.WS_YT)
    A.I("s_mul_i32", SPM2, S_S, L.PXM_STEP)
    A.I("s_add_u32", SPM2, SPM2, L.WS_PXM)

    def buf(step):
        gi = (step // 4) % 4
        o = (step % 4) * 16
        if gi < 2:
            return v(64 + gi * 64 + o, 16)
        return a((gi - 2) * 64 + o, 16)

    def issue(step):
        b = buf(step)
        if step < 32:
            for mt in range(2):
                A.I("buffer_load_dwordx4", b[4 * mt:4 * mt + 4], oz, S_WS, SZ, mods=f"offen offset:{1024 * mt} sc1")
            for j in range(2):
                A.I("buffer_load_dwordx4", b[8 + 4 * j:12 + 4 * j], op_, S_WS, SP, mods=f"offen offset:{1024 * j} sc1")
            A.I("s_add_u32", SZ, SZ, L.ZT_HEAD)
            A.I("s_add_u32", SP, SP, L.PXZ_HEAD)
        else:
            for mt in range(2):
                A.I("buffer_load_dwordx4", b[4 * mt:4 * mt + 4], oy, S_WS, SY, mods=f"offen offset:{256 * mt} sc1")
            for j in range(2):
                A.I("buffer_load_dwordx4", b[8 + 4 * j:12 + 4 * j], opm, S_WS, SPM2, mods=f"offen offset:{256 * j} sc1")
            A.I("s_add_u32", SY, SY, 4 * L.YT_HEAD)
            A.I("s_add_u32", SPM2, SPM2, 4 * L.PXM_HEAD)

    OA = lambda mt, j: v(192 + (mt * 2 + j) * 4, 4)
    DEPTH = 12
    for st in range(DEPTH):
        issue(st)
    for st in range(40):
        younger = min(st + DEPTH - 1, 39) - st
        A.I("s_waitcnt", f"vmcnt({4 * younger})")
        b = buf(st)
        for mt in range(2):
            for j in range(2):
                A.I("v_mfma_f32_16x16x32_bf16", OA(mt, j), b[4 * mt:4 * mt + 4], b[8 + 4 * j:12 + 4 * j],
                    OA(mt, j) if st else 0)
        if st + DEPTH < 40:
            issue(st + DEPTH)
    oo = oz
    A.I("v_mul_u32_u24", oo, L.D * 2, m16)
    A.I("v_lshl_add_u32", oo, g, 3, oo)
    SO, SG = SW_A[3], SW_A[4]
    A.I("s_mul_i32", SO, S_S, 32 * L.D * 2)
    A.I("s_lshl_b32", S_T[0], SW_COL, 1)
    A.I("s_add_u32", SO, SO, S_T[0])
    A.I("s_add_u32", SG, SO, L.WS_G)
    A.I("s_add_u32", SW_A[5], SO, 16 * L.D * 2)
    A.I("s_add_u32", SW_A[6], SG, 16 * L.D * 2)
    GV = lambda mt, j: v(64 + (mt * 2 + j) * 2, 2)
    XV = lambda mt, j: v(72 + (mt * 2 + j) * 2, 2)
    for mt in range(2):
        for j in range(2):
            A.I("buffer_load_dwordx2", GV(mt, j), oo, S_WS, SW_A[6] if j else SG, mods=f"offen offset:{32 * mt} sc1")
            A.I("buffer_load_dwordx2", XV(mt, j), oo, S_X, SW_A[5] if j else SO, mods=f"offen offset:{32 * mt}")
    A.I("s_waitcnt", "vmcnt(0)")
    tg, tx = T[8], T[9]
    for mt in range(2):
        for j in range(2):
            acc = OA(mt, j)
            for r_ in range(4):
                x = acc[r_]
                bf16_round(A, x, x)
                if r_ & 1:
                    A.I("v_and_b32", tg, 0xffff0000, GV(mt, j)[r_ >> 1])
                    A.I("v_and_b32", tx, 0xffff0000, XV(mt, j)[r_ >> 1])
                else:
                    A.I("v_lshlrev_b32", tg, 16, GV(mt, j)[r_ >> 1])
                    A.I("v_lshlrev_b32", tx, 16, XV(mt, j)[r_ >> 1])
                A.I("v_mul_f32", x, x, tg)
                bf16_round(A, x, x)
                A.I("v_add_f32", x, x, tx)
            pk = v(80 + (mt * 2 + j) * 2, 2)
            A.I("v_cvt_pk_bf16_f32", pk[0], acc[0], acc[1])
            A.I("v_cvt_pk_bf16_f32", pk[1], acc[2], acc[3])
            A.I("buffer_store_dwordx2", pk, oo, S_OUT, SW_A[5] if j else SO, mods=f"offen offset:{32 * mt}")


HEADER = """; generated by gen/gen.py -- recurrent memory transformer + gated FFN
{launches}
.amdgcn_target "amdgcn-amd-amdhsa--gfx950"
.text
"""


def kernel_text(name, A, nvgpr=512, accum=256):
    A.fix_hazards_fast()
    t = f".globl {name}\n.p2align 8\n.type {name},@function\n{name}:\n" + A.render()
    d = f""".section .rodata,"a"
.p2align 6
.amdhsa_kernel {name}
  .amdhsa_next_free_vgpr {nvgpr}
  .amdhsa_next_free_sgpr 102
  .amdhsa_accum_offset {accum}
  .amdhsa_group_segment_fixed_size 0
  .amdhsa_kernarg_size 120
  .amdhsa_user_sgpr_count 2
  .amdhsa_user_sgpr_kernarg_segment_ptr 1
  .amdhsa_system_sgpr_workgroup_id_x 1
.end_amdhsa_kernel
.text
"""
    return t, d


def main():
    mode = sys.argv[1] if len(sys.argv) > 1 else "w12"
    outp = sys.argv[2] if len(sys.argv) > 2 else "out.s"
    launches = []
    texts = []
    A = Asm()
    gen_prep(A)
    texts.append(kernel_text("prep_kernel", A, 64, 64))
    launches.append("; @launch kernel=prep_kernel grid=(256,1,1) block=(256,1,1) lds=0")
    def mk(name, nwg, roles):
        A = Asm()
        A.I("s_cmp_ge_u32", s(2), nwg)
        A.I("s_cbranch_scc1", "k_exit")
        prologue(A)
        roles(A)
        A.label("k_exit")
        A.I("s_endpgm")
        t, d = kernel_text(name, A)
        import re as _re
        labs = set(_re.findall(r"^([A-Za-z_][\w]*):", t, _re.M)) - {name}
        for lb in sorted(labs, key=len, reverse=True):
            t = _re.sub(r"(?<![\w.])" + lb + r"(?![\w])", name[:3] + "_" + lb, t)
        texts.append((t, d))
        launches.append(f"; @launch kernel={name} grid=({nwg},1,1) block=(256,1,1) lds=163840")

    NITEMS = 1744 + 832
    if mode == "split":
        mk("w12_kernel", 256, lambda A: worker(A, 256, 0, 1744, 0))
        mk("rec_kernel", 64, lambda A: rec.recurrence(A))
        mk("w3x_kernel", 256, lambda A: worker(A, 256, 1744, NITEMS, 0))
    elif mode == "full":
        def roles(A):
            A.I("s_cmp_ge_u32", s(2), 64)
            A.I("s_cbranch_scc1", "k_worker")
            rec.recurrence(A)
            A.label("k_worker")
            worker(A, 192, 0, NITEMS, 64)
        mk("main_kernel", 256, roles)
    out = HEADER.format(launches="\n".join(launches))
    for t, _ in texts:
        out += t
    for _, d in texts:
        out += d
    open(outp, "w").write(out)
    print("wrote", outp, len(out), "bytes")


if __name__ == "__main__":
    main()
```
